```python
import torch

def _softmax(x, axis=-1):
    return torch.softmax(x, dim=axis)

def _gelu(x):
    return torch.nn.functional.gelu(x, approximate='tanh')

def _silu(x):
    return torch.nn.functional.silu(x)

def _sigmoid(x):
    return torch.sigmoid(x)

def _layernorm(x, axis=-1, eps=1e-05):
    m = x.mean(dim=axis, keepdim=True)
    v = x.var(dim=axis, keepdim=True, unbiased=False)
    return (x - m) / torch.sqrt(v + eps)

def _scatter_add(tgt, idx, src, axis=0):
    return tgt.clone().index_add_(axis, idx, src)

def _segment_sum(src, seg, n):
    out = torch.zeros((n,) + src.shape[1:], dtype=src.dtype)
    return out.index_add_(0, seg, src)

def _pad(x, pw):
    flat = tuple((v for pair in reversed(pw) for v in pair))
    return torch.nn.functional.pad(x, flat)
kernel_name = 'standalone__swin_window_attn__vision'

def setup_inputs():

    _w = lambda a: (lambda t: t.to(torch.bfloat16) if t.is_floating_point() else t)(torch.as_tensor(a))
    H = W = 224 // 7 * 7
    C, win = (192, 7)
    return {'x': _w((lambda *s: torch.randn(*s, dtype=torch.bfloat16) * 0.2)(1, H, W, C)), 'wqkv': _w((lambda *s: torch.randn(*s, dtype=torch.bfloat16) * 0.2)(C, 3 * C)), 'wo': _w((lambda *s: torch.randn(*s, dtype=torch.bfloat16) * 0.05)(C, C))}

def reference(x, wqkv, wo):
    B, H, W, C = x.shape
    win = 7
    nh, nw = (H // win, W // win)
    xw = (lambda x, *d: x.permute(*d))(x.reshape(B, nh, win, nw, win, C), 0, 1, 3, 2, 4, 5)
    xw = xw.reshape(B * nh * nw, win * win, C)
    qkv = xw @ wqkv
    q, k, v = (qkv[..., :C].clone(), qkv[..., C:2 * C].clone(), qkv[..., 2 * C:].clone())
    scale = C ** (-0.5)
    p = _softmax(torch.einsum('bqc,bkc->bqk', q, k) * scale, axis=-1)
    o = torch.einsum('bqk,bkc->bqc', p, v) @ wo
    o = (lambda x, *d: x.permute(*d))(o.reshape(B, nh, nw, win, win, C), 0, 1, 3, 2, 4, 5)
    return o.reshape(B, H, W, C)
```

```python
import re
def R(p, lo, n=1):
    return [f"{p}{lo+i}" for i in range(n)]
def rng(p, lo, n):
    return f"{p}{lo}" if n == 1 else f"{p}[{lo}:{lo+n-1}]"

class I:
    __slots__ = ("t", "rd", "wr", "k", "x")
    def __init__(s, t, rd=(), wr=(), k="valu", x=None):
        s.t = t; s.rd = set(rd); s.wr = set(wr); s.k = k; s.x = x or {}
    def __repr__(s): return s.t

VALU_KINDS = ("valu", "trans", "perm", "rfl")
def is_valu(i): return i.k in VALU_KINDS

class Reg:
    def __init__(s, p, lo, n): s.p = p; s.lo = lo; s.n = n
    def __str__(s): return rng(s.p, s.lo, s.n)
    def regs(s): return R(s.p, s.lo, s.n)
    def sub(s, o, n=1):
        assert o + n <= s.n
        return Reg(s.p, s.lo + o, n)
    def __getitem__(s, o): return s.sub(o, 1)

def regs_of(*xs):
    o = []
    for x in xs:
        if isinstance(x, Reg): o += x.regs()
        elif isinstance(x, str) and re.fullmatch(r"-?(v|a|s)\d+|vcc|exec|m0|scc", x): o.append(x.lstrip('-'))
    return o

def mfma(d, a, b, c):
    cs = "0" if c is None else str(c)
    return I(f"v_mfma_f32_16x16x32_bf16 {d}, {a}, {b}, {cs}", regs_of(a, b) + (regs_of(c) if c is not None else []), regs_of(d), "mfma",
             {"c": set(regs_of(c)) if c is not None else set(), "ab": set(regs_of(a, b))})
def valu(op, d, *src, k="valu", extra_rd=(), extra_wr=()):
    return I(f"{op} {d}, " + ", ".join(str(x) for x in src), regs_of(*src) + list(extra_rd), regs_of(d) + list(extra_wr), k)
def cvtpk(d, a, b): return valu("v_cvt_pk_bf16_f32", d, a, b)
def salu(t, rd=(), wr=()): return I(t, rd, wr, "salu")
def ds_read(op, d, addr, off):
    return I(f"{op} {d}, {addr} offset:{off}", regs_of(addr), regs_of(d), "ds_read")
def ds_write(op, addr, src, off):
    return I(f"{op} {addr}, {src} offset:{off}", regs_of(addr, src), [], "ds_write")
def bload(op, d, voff, srd, soff, off, flags=""):
    return I(f"{op} {d}, {voff}, {srd}, {soff} offen offset:{off}{flags}", regs_of(voff, srd, soff) + (regs_of(d) if "d16" in op else []), regs_of(d), "vload")
def bstore(op, src, voff, srd, soff, off, flags=""):
    return I(f"{op} {src}, {voff}, {srd}, {soff} offen offset:{off}{flags}", regs_of(src, voff, srd, soff), [], "vstore", {"data": set(regs_of(src)), "wide": src.n >= 3})
def dma(voff, srd, soff, flags=""):
    return I(f"buffer_load_dwordx4 {voff}, {srd}, {soff} offen{flags} lds", regs_of(voff, srd, soff) + ["m0"], [], "dma")
def wait(vm=None, lgkm=None):
    t = "s_waitcnt" + (f" vmcnt({vm})" if vm is not None else "") + (f" lgkmcnt({lgkm})" if lgkm is not None else "")
    return I(t, k="wait", x={"vm": vm, "lgkm": lgkm})
def barrier(): return I("s_barrier", k="salu")
def label(n): return I(f"{n}:", k="label")
def raw(t, rd=(), wr=(), k="salu"): return I(t, rd, wr, k)

def insert_waits(ins):
    out = []; vm = []; lg = []; tags = {}; keep = []
    for i in ins:
        if i.k == "wait" and "tag" in i.x:
            nv = None
            for j, d in enumerate(vm):
                if tags.get(id(d)) == i.x["tag"]: nv = len(vm) - 1 - j
            w = wait(nv, i.x["lgkm"]) if (nv is not None or i.x["lgkm"] is not None) else None
            if w is None: continue
            i = w
        if i.k == "wait":
            if i.x["vm"] is not None: vm = vm[len(vm) - i.x["vm"]:] if i.x["vm"] < len(vm) else vm
            if i.x["lgkm"] is not None: lg = lg[len(lg) - i.x["lgkm"]:] if i.x["lgkm"] < len(lg) else lg
            if i.x["vm"] == 0: vm = []
            if i.x["lgkm"] == 0: lg = []
            out.append(i); continue
        touch = i.rd | i.wr
        nv = nl = None
        for j, d in enumerate(vm):
            if d & touch: nv = len(vm) - 1 - j
        for j, d in enumerate(lg):
            if d & touch: nl = len(lg) - 1 - j
        if i.k == "vload" and "d16" in i.t and nv is not None:
            nv2 = None
            for j, d in enumerate(vm):
                if d & (i.rd - i.wr): nv2 = len(vm) - 1 - j
            nv = nv2
        if nv is not None or nl is not None:
            if nv is not None: assert nv <= 63; vm = vm[len(vm) - nv:] if nv else []
            if nl is not None:
                nl = min(nl, 15); lg = lg[len(lg) - nl:] if nl else []
            out.append(wait(nv, nl))
        if i.k in ("vload", "vstore", "dma", "vatomic"):
            d = set(i.wr); vm.append(d); tags[id(d)] = i.x.get("tag"); keep.append(d)
        elif i.k == "ds_read": lg.append(set(i.wr))
        elif i.k == "ds_write": lg.append(set())
        assert len(vm) <= 63, "vmcnt overflow"
        out.append(i)
    return out

def need(p, c):
    n = 0
    pv = {r for r in p.wr if r[0] in "va" and r != "vcc"}
    ps = {r for r in p.wr if r[0] == "s" or r == "vcc"}
    if is_valu(p):
        if c.k == "mfma" and pv & c.rd: n = max(n, 2)
        if c.k == "perm" and pv & c.rd: n = max(n, 2)
        if c.k == "rfl" and pv & c.rd: n = max(n, 1)
        if p.k == "trans" and c.k != "trans" and (is_valu(c) or c.k=="mfma") and pv & c.rd: n = max(n, 1)
        if ps:
            if is_valu(c) and ps & c.rd: n = max(n, 2)
            if c.k in ("vload", "vstore", "dma", "vatomic") and ps & c.rd: n = max(n, 5)
            if c.k == "salu" and ps & c.rd: n = max(n, 1)
        if "exec" in p.wr: n = max(n, 5)
    if p.k == "mfma":
        if c.k == "mfma":
            if pv & c.x["ab"]: n = max(n, 8)
            if pv & c.x["c"] and pv != c.x["c"]: n = max(n, 6)
            if pv & c.wr and pv != c.x["c"]: n = max(n, 6)
        elif c.k != "wait" and c.k != "salu" and c.k != "label":
            if pv & (c.rd | c.wr): n = max(n, 8)
        if is_valu(c) and p.x["c"] & c.wr: n = max(n, 3)
    if p.k == "vstore" and p.x.get("wide") and (p.x["data"] & c.wr): n = max(n, 2)
    if p.k == "salu" and "m0" in p.wr and c.k == "dma": n = max(n, 1)
    return n

def insert_nops(ins):
    out = []; nn = 0
    for c in ins:
        if c.k in ("label",): out.append(c); continue
        dist = 0; req = 0
        for p in reversed(out[-24:]):
            if p.k == "label": continue
            r = need(p, c) - dist
            req = max(req, r)
            dist += p.x.get("ws", 1) if p.k == "nop" else 1
            if dist >= 10: break
        if req > 0:
            out.append(I(f"s_nop {req-1}", k="nop", x={"ws": req})); nn += req
        out.append(c)
    return out, nn

def interleave(ms, fs, per=2, start=0):
    out = []; q = list(fs);
    for n, m in enumerate(ms):
        out.append(m)
        if n < start: continue
        c = 0
        while q and c < per:
            f = q[0]
            if isinstance(f, tuple):
                if f[1] > n: break
                f = f[0]
            out.append(f); q.pop(0); c += (2 if f.k == "trans" else 1)
    for f in q: out.append(f[0] if isinstance(f, tuple) else f)
    return out

def finish(ins):
    a = insert_waits(ins)
    b, nn = insert_nops(a)
    return b, nn
def text(ins): return "\n".join(("" if i.k == "label" else "    ") + i.t for i in ins)

LAT = {"mfma": 44, "ds_read": 160, "valu": 8, "trans": 12, "perm": 8, "vload": 0, "salu": 4, "rfl": 12}
def schedule(prog, per=2, look=24, perfn=None):
    n = len(prog)
    lastw = {}; readers = {}
    deps = [set() for _ in range(n)]; raw_ = [set() for _ in range(n)]
    for j, i in enumerate(prog):
        RD = i.rd | set(i.x.get("pr", ())); WR = i.wr | set(i.x.get("pw", ()))
        for r in RD:
            if r in lastw:
                deps[j].add(lastw[r])
                if r[0] != '#': raw_[j].add(lastw[r])
        for r in WR:
            if r in lastw:
                deps[j].add(lastw[r])
                if prog[lastw[r]].k in ("mfma","ds_read") and r[0] != '#': raw_[j].add(lastw[r])
            for k in readers.get(r, ()):
                if k != j: deps[j].add(k)
        for r in RD: readers.setdefault(r, []).append(j)
        for r in WR: lastw[r] = j; readers[r] = []
    M = [j for j in range(n) if prog[j].k == "mfma"]
    F = [j for j in range(n) if prog[j].k != "mfma"]
    done = [None] * n
    out = []; t = 0; lastm = -100; mi = 0
    def depsok(j): return all(done[d] is not None for d in deps[j])
    def ready(j, now):
        if not depsok(j): return False
        for d in raw_[j]:
            p = prog[d]
            if p.k == "mfma" and prog[j].k == "mfma" and (p.wr == prog[j].x["c"]) and not (p.wr & prog[j].x["ab"]): continue
            if done[d] + LAT.get(p.k, 0) > now: return False
        return True
    def cost(i): return 8 if i.k == "trans" else (0 if i.k == "label" else 4)
    def emit(j):
        nonlocal t, lastm
        i = prog[j]
        if i.k == "mfma":
            t = max(t, lastm + 16); lastm = t; done[j] = t; t += 8
        else:
            done[j] = t; t += cost(i)
        out.append(i)
    def pickF(now):
        for idx in range(min(look, len(F))):
            j = F[idx]
            if ready(j, now): return idx
            if prog[j].x.get("fence"): break
        return None
    while mi < len(M) or F:
        if mi < len(M) and ready(M[mi], max(t, lastm + 16)):
            emit(M[mi]); mi += 1
            p = perfn(M[mi-1]) if perfn else per
            b = 0
            while F and b < p:
                idx = pickF(t)
                if idx is None: break
                j = F.pop(idx); b += cost(prog[j]) / 4; emit(j)
            continue
        idx = pickF(t) if F else None
        if idx is not None:
            emit(F.pop(idx)); continue
        if mi < len(M) and depsok(M[mi]):
            emit(M[mi]); mi += 1; continue
        for idx in range(len(F)):
            if depsok(F[idx]): emit(F.pop(idx)); break
        else:
            raise RuntimeError("deadlock in scheduler")
    return out, t
```

```python
import sys, math
from asmgen import *
KN = "standalone__swin_window_attn__vision_kernel"
XBYTES = 224*224*192*2
opt = dict(per1=2, per2=2, persm=3, stamps=0)
for a in sys.argv[1:]:
    k, v = a.split("="); opt[k] = int(v)
V = lambda lo, n=1: Reg("v", lo, n)
A_ = lambda lo, n=1: Reg("a", lo, n)
S = lambda lo, n=1: Reg("s", lo, n)
def P(i, pr=(), pw=(), **kw):
    i.x["pr"] = list(i.x.get("pr", [])) + list(pr); i.x["pw"] = list(i.x.get("pw", [])) + list(pw); i.x.update(kw); return i
VMO = ["#VM"]
def vm(i, **kw): return P(i, pr=VMO, pw=VMO, **kw)

SRD_X, SRD_W, SRD_O, SRD_N, SRD_WO, SRD_D = S(16,4), S(20,4), S(24,4), S(28,4), S(32,4), S(36,4)
def header_loads():
    o = []
    o.append(raw("s_load_dwordx8 s[4:11], s[0:1], 0", ["s0","s1"], R("s",4,8)))
    o.append(raw("s_load_dwordx4 s[12:15], s[0:1], 32", ["s0","s1"], R("s",12,4)))
    return o
def srd(d, p, nbytes):
    return [salu(f"s_mov_b32 s{d.lo}, s{p}", [f"s{p}"], [f"s{d.lo}"]),
            salu(f"s_and_b32 s{d.lo+1}, s{p+1}, 0xffff", [f"s{p+1}"], [f"s{d.lo+1}", "scc"]),
            salu(f"s_mov_b32 s{d.lo+2}, {nbytes}", [], [f"s{d.lo+2}"]),
            salu(f"s_mov_b32 s{d.lo+3}, 0x20000", [], [f"s{d.lo+3}"])]

def producer(idx_s, vb, store_flags=""):
    o = []
    tau, st, t0, t1 = "s50", "s51", "s52", "s53"
    o.append(salu(f"s_mul_i32 {tau}, {idx_s}, 43", [idx_s], [tau]))
    o.append(salu(f"s_lshr_b32 {tau}, {tau}, 8", [tau], [tau, "scc"]))
    o.append(salu(f"s_mul_i32 {t0}, {tau}, 6", [tau], [t0]))
    o.append(salu(f"s_sub_u32 {st}, {idx_s}, {t0}", [idx_s, t0], [st, "scc"]))
    vi, vg, va, vbo, vt = (V(vb+k) for k in range(5))
    o.append(valu("v_and_b32", vi, 15, "v1"))
    o.append(valu("v_lshrrev_b32", vg, 4, "v1"))
    o.append(valu("v_lshrrev_b32", vt, 2, vi))
    o.append(valu("v_lshlrev_b32", vt, 3, vt))
    o.append(valu("v_and_b32", vi, 3, vi))
    o.append(valu("v_add_u32", vi, vi, vt))
    o.append(salu(f"s_mul_i32 {t0}, {st}, {32*1152}", [st], [t0]))
    o.append(valu("v_mul_u32_u24", va, 1152, vi))
    o.append(valu("v_lshl_add_u32", va, vg, 4, va))
    o.append(valu("v_add_u32", va, t0, va))
    o.append(salu(f"s_lshr_b32 {t0}, {tau}, 1", [tau], [t0, "scc"]))
    o.append(salu(f"s_lshl_b32 {t0}, {t0}, 6", [t0], [t0, "scc"]))
    o.append(salu(f"s_and_b32 {t1}, {tau}, 1", [tau], [t1, "scc"]))
    o.append(salu(f"s_lshl_b32 {t1}, {t1}, 3", [t1], [t1, "scc"]))
    o.append(salu(f"s_add_u32 {t0}, {t0}, {t1}", [t0, t1], [t0, "scc"]))
    o.append(valu("v_mul_u32_u24", vbo, 8*384, vg))
    o.append(valu("v_lshl_add_u32", vbo, vi, 1, vbo))
    o.append(valu("v_add_u32", vbo, t0, vbo))
    base = (vb + 5 + 3) // 4 * 4
    Af = [[V(base + (b*6+ks)*4, 4) for ks in range(6)] for b in range(2)]
    Bf = [V(base + 48 + ks*4, 4) for ks in range(6)]
    D = [V(base + 72 + b*4, 4) for b in range(2)]
    Ov = V(base + 80, 4)
    o.append(salu(f"s_movk_i32 {t1}, {4*1152}", [], [t1]))
    for ks in range(6):
        o.append(vm(bload("buffer_load_dwordx4", Af[0][ks], va, SRD_W, 0, 768 + 64*ks)))
        o.append(vm(bload("buffer_load_dwordx4", Af[1][ks], va, SRD_W, t1, 768 + 64*ks)))
        o.append(salu(f"s_mov_b32 {t0}, {32*384*ks}", [], [t0]))
        for e in range(8):
            dst = Bf[ks][e//2] if e % 2 == 0 else V(base + 84 + ks*4 + e//2)
            o.append(vm(bload("buffer_load_ushort", dst, vbo, SRD_WO, t0, 384*e)))
    for ks in range(6):
        for h in range(4):
            o.append(valu("v_lshl_or_b32", Bf[ks][h], V(base + 84 + ks*4 + h), 16, Bf[ks][h]))
    for ks in range(6):
        for b in range(2):
            o.append(mfma(D[b], Af[b][ks], Bf[ks], None if ks == 0 else D[b]))
    for b in range(2):
        o.append(cvtpk(Ov[2*b], D[b][0], D[b][1])); o.append(cvtpk(Ov[2*b+1], D[b][2], D[b][3]))
    o.append(salu(f"s_lshl_b32 {t0}, {idx_s}, 10", [idx_s], [t0, "scc"]))
    o.append(valu("v_lshlrev_b32", vt, 4, "v1"))
    o.append(vm(bstore("buffer_store_dwordx4", Ov, vt, SRD_N, t0, 0, store_flags)))
    return o

def prod_kernel():
    o = header_loads()
    o.append(salu("s_cmp_ge_u32 s2, 72", ["s2"], ["scc"]))
    o.append(raw("s_cbranch_scc1 L_pend", ["scc"]))
    o.append(valu("v_and_b32", V(1), 63, "v0"))
    o.append(wait(lgkm=0))
    o += srd(SRD_W, 6, 192*576*2) + srd(SRD_WO, 8, 192*192*2) + srd(SRD_N, 14, 72*1024)
    o += producer("s2", 8)
    o.append(label("L_pend"))
    o.append(raw("s_endpgm"))
    return finish(o)[0]

vLANE = V(1); vXO = [V(2+t) for t in range(4)]; vSO3 = V(6); vWD = V(7)
vTR = [[V(8), V(9)], [V(10), V(11)]]; vNR = [V(12), V(13)]; vND = V(14); vNINF = V(15)
TMP = lambda tq, k: V(16 + tq*4 + k)
SA = lambda tk, tq: V(32 + (tk*4+tq)*4, 4)
ACC = lambda b, t: V(96 + b*16 + t*4, 4)
QF = lambda t: V(128 + t*4, 4)
KF = lambda t: V(144 + t*4, 4)
PF = lambda tq, ks: V(160 + (tq*2+ks)*4, 4)
def UF(tau, ks):
    base = 192 + tau*8 if tau < 8 else 128 + (tau-8)*8
    return V(base + ks*4, 4)
X = lambda t, s: A_(t*24 + s*4, 4)
WB = lambda b, s: A_(96 + b*24 + s*4, 4)
sWAVE, sLDSW, sC, sMASK = "s40", "s41", "s42", S(44, 2)
sJ = ["s46", "s47", "s48"]

def stamp(k):
    return [P(raw(f"s_memtime s[{60+2*k}:{61+2*k}]", [], []), pr=["#LDS"], pw=["#LDS"])] if opt["stamps"] else []

def main_kernel():
    pre = []
    if opt["stamps"]: pre.append(raw("s_memrealtime s[56:57]")); pre.append(raw("s_memtime s[60:61]"))
    pre += header_loads()
    pre.append(salu("s_cmp_ge_u32 s2, 256", ["s2"], ["scc"]))
    pre.append(raw("s_cbranch_scc1 L_end", ["scc"]))
    t0, t1, t2, t3 = V(16), V(17), V(18), V(19)
    pre.append(valu("v_and_b32", vLANE, 63, "v0"))
    pre.append(valu("v_lshrrev_b32", t0, 6, "v0"))
    pre.append(valu("v_readfirstlane_b32", sWAVE, t0, k="rfl"))
    pre.append(salu("s_lshr_b32 s50, s2, 3", ["s2"], ["s50", "scc"]))
    pre.append(salu("s_and_b32 s51, s2, 7", ["s2"], ["s51", "scc"]))
    pre.append(salu("s_lshl_b32 s51, s51, 2", ["s51"], ["s51", "scc"]))
    pre.append(salu(f"s_add_u32 s51, s51, {sWAVE}", ["s51", sWAVE], ["s51", "scc"]))
    pre.append(salu(f"s_mul_i32 s50, s50, {7*224*384}", ["s50"], ["s50"]))
    pre.append(salu(f"s_mul_i32 s51, s51, {7*384}", ["s51"], ["s51"]))
    pre.append(salu("s_add_u32 s50, s50, s51", ["s50", "s51"], ["s50", "scc"]))
    pre.append(valu("v_and_b32", t0, 15, vLANE))
    pre.append(valu("v_lshrrev_b32", t1, 4, vLANE))
    pre.append(valu("v_lshlrev_b32", t2, 4, t1))
    pre.append(valu("v_add_u32", t2, "s50", t2))
    for t in range(3):
        pre.append(valu("v_add_u32", t3, 16*t, t0))
        pre.append(valu("v_mul_u32_u24", vXO[t], 37, t3))
        pre.append(valu("v_lshrrev_b32", vXO[t], 8, vXO[t]))
        pre.append(valu("v_mul_u32_u24", vXO[t], 217, vXO[t]))
        pre.append(valu("v_add_u32", vXO[t], vXO[t], t3))
        pre.append(valu("v_mul_u32_u24", vXO[t], 384, vXO[t]))
        pre.append(valu("v_add_u32", vXO[t], vXO[t], t2))
    pre.append(valu("v_add_u32", vXO[3], (6*224+6)*384, t2))
    pre.append(wait(lgkm=0))
    pre += srd(SRD_X, 4, XBYTES) + srd(SRD_W, 6, 192*576*2)
    for t in range(4):
        for s in range(6):
            pre.append(vm(bload("buffer_load_dwordx4", X(t, s), vXO[t], SRD_X, 0, 64*s)))
    pre.append(valu("v_lshrrev_b32", t2, 2, vLANE))
    pre.append(valu("v_mul_u32_u24", vWD, 1152, t2))
    pre.append(valu("v_lshrrev_b32", t2, 5, vLANE))
    pre.append(valu("v_lshlrev_b32", t2, 1, t2))
    pre.append(valu("v_and_b32", t3, 3, vLANE))
    pre.append(valu("v_xor_b32", t2, t2, t3))
    pre.append(valu("v_lshl_add_u32", vWD, t2, 4, vWD))
    pre.append(salu(f"s_mul_i32 s50, {sWAVE}, {3*18432}", [sWAVE], ["s50"]))
    pre.append(valu("v_add_u32", vWD, "s50", vWD))
    pre.append(salu(f"s_mul_i32 {sLDSW}, {sWAVE}, 3072", [sWAVE], [sLDSW]))
    for jj in range(3): pre.append(salu(f"s_mov_b32 {sJ[jj]}, {jj*18432}", [], [sJ[jj]]))
    for u in range(6):
        for m in range(2):
            for jj in range(3):
                imm = m*384 + u*64
                pre.append(salu(f"s_add_u32 m0, {sLDSW}, {u*24576 + m*12288 + jj*1024 - imm}", [sLDSW], ["m0", "scc"]))
                pre.append(vm(dma(vWD, SRD_W, sJ[jj], f" offset:{imm}"), tag=f"W{u}"))
    pre += srd(SRD_O, 10, XBYTES) + srd(SRD_N, 14, 72*1024)
    pre.append(valu("v_cmp_eq_u32", "vcc", 0, t0))
    pre.append(valu("v_mov_b32", vSO3, 0x7f000000))
    pre.append(valu("v_cndmask_b32", vSO3, vSO3, vXO[3], "vcc"))
    pre.append(valu("v_lshrrev_b32", t2, 2, t0))
    pre.append(valu("v_lshl_add_u32", t2, t1, 3, t2))
    pre.append(valu("v_lshlrev_b32", t2, 6, t2))
    pre.append(valu("v_and_b32", t3, 3, t0))
    pre.append(valu("v_lshl_add_u32", t2, t3, 3, t2))
    pre.append(valu("v_and_b32", t3, 1, t1))
    pre.append(valu("v_lshl_add_u32", vTR[0][0], t3, 5, t2))
    pre.append(valu("v_xor_b32", vTR[0][1], 32, vTR[0][0]))
    pre.append(valu("v_add_u32", vTR[1][0], 24576, vTR[0][0]))
    pre.append(valu("v_add_u32", vTR[1][1], 24576, vTR[0][1]))
    pre.append(valu("v_lshlrev_b32", vNR[0], 4, vLANE))
    pre.append(valu("v_add_u32", vNR[1], 36864, vNR[0]))
    pre.append(salu(f"s_mul_i32 s49, {sWAVE}, 6144", [sWAVE], ["s49"]))
    pre.append(valu("v_add_u32", vND, "s49", vNR[0]))
    pre.append(valu("v_mov_b32", vNINF, 0xff800000))
    c = 192 ** -0.5 * math.log2(math.e)
    import struct
    pre.append(salu(f"s_mov_b32 {sC}, 0x{struct.unpack('<I', struct.pack('<f', c))[0]:08x}", [], [sC]))
    pre.append(salu(f"s_mov_b64 {sMASK}, 0xffff", [], sMASK.regs()))
    for tq in range(4): pre.append(valu("v_mov_b32", PF(tq, 1)[3], 0))

    p = []
    def sync(tag, rdregs, after=()):
        w = I("WAIT", rdregs, [], "wait", {"tag": tag, "lgkm": 0 if rdregs else None, "vm": None})
        p.append(P(w, pr=["#LDS", "#VM"] + list(after), pw=["#LDS", "#VM"], fence=1))
        p.append(P(barrier(), pr=["#LDS"], pw=["#LDS"], fence=1))
    def wreads(u, g):
        m, a = g >> 1, g & 1
        for s in range(6):
            for h in range(2):
                p.append(P(ds_read("ds_read_b64_tr_b16", WB(g & 1, s).sub(2*h, 2), vTR[u & 1][a], m*12288 + s*2048 + h*256), pr=["#LDS"]))
    def group(u, g):
        b = g & 1
        for s in range(6):
            for t in range(4):
                i = mfma(ACC(b, t), WB(b, s), X(t, s), None if s == 0 else ACC(b, t))
                if s == 2 and t == 0: P(i, pw=[f"#g{u}_{g}"])
                p.append(i)
    def cvts(g):
        m, a = g >> 1, g & 1
        for t in range(4):
            d = (QF if m == 0 else KF)(t)
            p.append(cvtpk(d[2*a], ACC(a, t)[0], ACC(a, t)[1])); p.append(cvtpk(d[2*a+1], ACC(a, t)[2], ACC(a, t)[3]))
    def sblock(u):
        for tk in range(4):
            for tq in range(4):
                p.append(mfma(SA(tk, tq), KF(tk), QF(tq), None if u == 0 else SA(tk, tq)))
    def ndma(part):
        for half in range(2):
            off = part*24576 + half*4096
            p.append(salu(f"s_mov_b32 s50, {off}", [], ["s50"]))
            p.append(salu(f"s_add_u32 m0, s49, {off}", ["s49"], ["m0", "scc"]))
            for jj in range(4 if half == 0 else 2):
                p.append(P(vm(dma(vND, SRD_N, "s50", f" offset:{jj*1024}"), tag="N"), pr=["#LDS"]))
    def nreads(tau):
        for s in range(6):
            off = (tau*6 + s)*1024
            p.append(P(ds_read("ds_read_b128", WB(tau & 1, s), vNR[off >= 36864], off - (36864 if off >= 36864 else 0)), pr=["#LDS"]))
    def ugroup(tau):
        b = tau & 1
        for s in range(6):
            for t in range(4):
                p.append(mfma(ACC(b, t), X(t, s), WB(b, s), None if s == 0 else ACC(b, t)))
    def ucvts(tau):
        b = tau & 1
        for t in range(4):
            d = UF(tau, t >> 1)
            p.append(cvtpk(d[2*(t&1)], ACC(b, t)[0], ACC(b, t)[1])); p.append(cvtpk(d[2*(t&1)+1], ACC(b, t)[2], ACC(b, t)[3]))
    def xlane(op, m, m2):
        for sw in ("v_permlane32_swap_b32", "v_permlane16_swap_b32"):
            p.append(valu("v_mov_b32", m2, m))
            p.append(I(f"{sw} {m}, {m2}", regs_of(m, m2), regs_of(m, m2), "perm"))
            p.append(valu(op, m, m, m2))
    def softmax(tq):
        m, m2, s1, s2 = (TMP(tq, k) for k in range(4))
        vals = [SA(tk, tq)[r] for tk in range(3) for r in range(4)] + [SA(3, tq)[0]]
        L = vals[12]
        p.append(valu("v_cndmask_b32", L, vNINF, L, sMASK))
        p.append(valu("v_max3_f32", m, vals[0], vals[1], vals[2]))
        p.append(valu("v_max3_f32", m2, vals[3], vals[4], vals[5]))
        p.append(valu("v_max3_f32", m, m, vals[6], vals[7]))
        p.append(valu("v_max3_f32", m2, m2, vals[8], vals[9]))
        p.append(valu("v_max3_f32", m, m, vals[10], vals[11]))
        p.append(valu("v_max3_f32", m, m, m2, L))
        xlane("v_max_f32", m, m2)
        p.append(valu("v_mul_f32", m, sC, m))
        for v in vals:
            p.append(valu("v_fma_f32", v, v, sC, "-" + str(m)))
            p.append(valu("v_exp_f32", v, v, k="trans"))
        p.append(valu("v_add_f32", s1, vals[0], vals[1])); p.append(valu("v_add_f32", s2, vals[2], vals[3]))
        for k in range(4, 12, 2):
            p.append(valu("v_add_f32", s1, s1, vals[k])); p.append(valu("v_add_f32", s2, s2, vals[k+1]))
        p.append(valu("v_add_f32", s1, s1, L))
        p.append(valu("v_add_f32", s1, s1, s2))
        xlane("v_add_f32", s1, s2)
        p.append(valu("v_rcp_f32", s1, s1, k="trans"))
        for v in vals: p.append(valu("v_mul_f32", v, v, s1))
        for tk in range(3):
            d = PF(tq, tk >> 1)
            p.append(cvtpk(d[2*(tk&1)], vals[4*tk], vals[4*tk+1])); p.append(cvtpk(d[2*(tk&1)+1], vals[4*tk+2], vals[4*tk+3]))
        p.append(cvtpk(PF(tq, 1)[2], L, 0))
    OA = lambda b, a, tq: V(32 + b*32 + (a*4+tq)*4, 4)
    OUT = lambda k: V(16 + (k % 4)*4, 4)
    cnt = [0]
    def ogroup(v):
        b = v & 1
        for tq in range(4):
            for a in range(2):
                for ks in range(2):
                    p.append(mfma(OA(b, a, tq), UF(2*v+a, ks), PF(tq, ks), None if ks == 0 else OA(b, a, tq)))
    def ostore(v):
        b = v & 1
        for tq in range(4):
            o = OUT(cnt[0]); cnt[0] += 1
            for a in range(2):
                p.append(cvtpk(o[2*a], OA(b, a, tq)[0], OA(b, a, tq)[1])); p.append(cvtpk(o[2*a+1], OA(b, a, tq)[2], OA(b, a, tq)[3]))
            p.append(vm(bstore("buffer_store_dwordx4", o, vXO[tq] if tq < 3 else vSO3, SRD_O, 0, 64*v)))

    sync("W0", [])
    p += stamp(1)
    wreads(0, 0)
    for u in range(6):
        wreads(u, 1); group(u, 0)
        if u > 0: cvts(3); sblock(u-1)
        wreads(u, 2); group(u, 1); cvts(0)
        wreads(u, 3); group(u, 2); cvts(1)
        gm = len(p)
        group(u, 3)
        g3 = p[gm:]; del p[gm:]
        p.extend(g3[:9])
        sync(f"W{u+1}" if u < 5 else "N", [r for s in range(6) for r in WB(1, s).regs()], after=[f"#g{u}_3"])
        if u < 3: ndma(u)
        if u < 5:
            if u < 4:
                for a in range(2): p.append(valu("v_add_u32", vTR[u & 1][a], 49152, vTR[u & 1][a]))
            wreads(u+1, 0)
        else:
            p += stamp(2)
            nreads(0)
        p.extend(g3[9:]); cvts(2)
    n1 = len([i for i in p if i.k == "mfma"])
    nreads(1); ugroup(0); cvts(3); sblock(5)
    ucvts(0)
    nsm = 4
    for tau in range(1, 12):
        if tau + 1 < 12: nreads(tau+1)
        ugroup(tau)
        if 1 <= tau <= 4: softmax(tau-1)
        ucvts(tau)
        for k in {5: [0], 6: [1], 8: [2], 9: [3], 11: [4, 5]}.get(tau, []):
            ogroup(k); ostore(k)
    n2 = n1 + 24 + 16 + 24*4
    mf = [i for i in p if i.k == "mfma"]
    mi = {id(i): n for n, i in enumerate(mf)}
    def perfn(j):
        n = mi[id(p[j])]
        return opt["per1"] if n < n1 + 40 else (opt["persm"] if n < n2 else opt["per2"])
    body, t = schedule(p, look=32, perfn=perfn)
    post = []
    if opt["stamps"]:
        post.append(raw("s_memtime s[66:67]")); post.append(wait(vm=0)); post.append(raw("s_memtime s[68:69]")); post.append(raw("s_memrealtime s[58:59]"))
        post.append(wait(lgkm=0))
        post.append(salu("s_mov_b32 s30, 0x200000"))
        post.append(salu("s_lshl_b32 s50, s2, 2")); post.append(salu(f"s_add_u32 s50, s50, {sWAVE}")); post.append(salu("s_lshl_b32 s50, s50, 5")); post.append(salu("s_add_u32 s50, s50, 0x100000"))
        for k, (a, b) in enumerate([("s56", None), ("s57", None), ("s58", None), ("s59", None), ("s62", "s60"), ("s64", "s60"), ("s66", "s60"), ("s68", "s60")]):
            if b: post.append(salu(f"s_sub_u32 {a}, {a}, {b}"))
            post.append(valu("v_mov_b32", V(16+k), a))
        post.append(valu("v_mov_b32", V(24), 0))
        post.append(salu("s_mov_b64 exec, 1"))
        post.append(bstore("buffer_store_dwordx4", V(16,4), V(24), SRD_N, "s50", 0))
        post.append(bstore("buffer_store_dwordx4", V(20,4), V(24), SRD_N, "s50", 16))
    post.append(label("L_end")); post.append(raw("s_endpgm"))
    full, nn = finish(pre + body + post)
    sys.stderr.write(f"main: {len(full)} instrs, mfma {len(mf)}, est cycles {t}, nop states {nn}\n")
    return full

def kd(name, vg, acc, sg=102):
    return f""".amdhsa_kernel {name}
  .amdhsa_next_free_vgpr {vg}
  .amdhsa_next_free_sgpr {sg}
  .amdhsa_accum_offset {acc}
  .amdhsa_group_segment_fixed_size 0
  .amdhsa_kernarg_size 48
  .amdhsa_user_sgpr_count 2
  .amdhsa_user_sgpr_kernarg_segment_ptr 1
  .amdhsa_system_sgpr_workgroup_id_x 1
.end_amdhsa_kernel"""
print(f"""; swin window attention, stage A: N = Wv*Wo folded (pre-kernel), QK direct
; @launch kernel=prod_kernel grid=(72,1,1) block=(64,1,1) lds=0
; @launch kernel={KN} grid=(256,1,1) block=(256,1,1) lds=147456
.amdgcn_target "amdgcn-amd-amdhsa--gfx950"
.text
.globl prod_kernel
.p2align 8
.type prod_kernel,@function
prod_kernel:
{text(prod_kernel())}
.globl {KN}
.p2align 8
.type {KN},@function
{KN}:
{text(main_kernel())}
.section .rodata,"a"
.p2align 6
{kd("prod_kernel", 128, 128)}
.p2align 6
{kd(KN, 400, 256)}""")
```

```python
import sys, math
from asmgen import *
KN = "standalone__swin_window_attn__vision_kernel"
XBYTES = 224*224*192*2
opt = dict(per1=2, per2=2, persm=3, stamps=0, exp=0, xfl=0, sfl=0)
FLG={0:"",1:" nt",2:" sc1",3:" sc0 sc1",4:" sc0 sc1 nt",5:" sc1 nt"}
for a in sys.argv[1:]:
    k, v = a.split("="); opt[k] = int(v)
V = lambda lo, n=1: Reg("v", lo, n)
A_ = lambda lo, n=1: Reg("a", lo, n)
S = lambda lo, n=1: Reg("s", lo, n)
def P(i, pr=(), pw=(), **kw):
    i.x["pr"] = list(i.x.get("pr", [])) + list(pr); i.x["pw"] = list(i.x.get("pw", [])) + list(pw); i.x.update(kw); return i
VMO = ["#VM"]
def vm(i, **kw): return P(i, pr=VMO, pw=VMO, **kw)

SRD_X, SRD_W, SRD_O, SRD_N, SRD_WO, SRD_D = S(16,4), S(20,4), S(24,4), S(28,4), S(32,4), S(36,4)
def header_loads():
    o = []
    o.append(raw("s_load_dwordx8 s[4:11], s[0:1], 0", ["s0","s1"], R("s",4,8)))
    o.append(raw("s_load_dwordx4 s[12:15], s[0:1], 32", ["s0","s1"], R("s",12,4)))
    return o
def srd(d, p, nbytes):
    return [salu(f"s_mov_b32 s{d.lo}, s{p}", [f"s{p}"], [f"s{d.lo}"]),
            salu(f"s_and_b32 s{d.lo+1}, s{p+1}, 0xffff", [f"s{p+1}"], [f"s{d.lo+1}", "scc"]),
            salu(f"s_mov_b32 s{d.lo+2}, {nbytes}", [], [f"s{d.lo+2}"]),
            salu(f"s_mov_b32 s{d.lo+3}, 0x20000", [], [f"s{d.lo+3}"])]

def producer(idx_s, vb, store_flags=""):
    o = []
    tau, st, t0, t1 = "s50", "s51", "s52", "s53"
    o.append(salu(f"s_mul_i32 {tau}, {idx_s}, 43", [idx_s], [tau]))
    o.append(salu(f"s_lshr_b32 {tau}, {tau}, 8", [tau], [tau, "scc"]))
    o.append(salu(f"s_mul_i32 {t0}, {tau}, 6", [tau], [t0]))
    o.append(salu(f"s_sub_u32 {st}, {idx_s}, {t0}", [idx_s, t0], [st, "scc"]))
    vi, vg, va, vbo, vt = (V(vb+k) for k in range(5))
    o.append(valu("v_and_b32", vi, 15, "v1"))
    o.append(valu("v_lshrrev_b32", vg, 4, "v1"))
    o.append(valu("v_lshrrev_b32", vt, 2, vi))
    o.append(valu("v_lshlrev_b32", vt, 3, vt))
    o.append(valu("v_and_b32", vi, 3, vi))
    o.append(valu("v_add_u32", vi, vi, vt))
    o.append(salu(f"s_mul_i32 {t0}, {st}, {32*1152}", [st], [t0]))
    o.append(valu("v_mul_u32_u24", va, 1152, vi))
    o.append(valu("v_lshl_add_u32", va, vg, 4, va))
    o.append(valu("v_add_u32", va, t0, va))
    o.append(salu(f"s_lshr_b32 {t0}, {tau}, 1", [tau], [t0, "scc"]))
    o.append(salu(f"s_lshl_b32 {t0}, {t0}, 6", [t0], [t0, "scc"]))
    o.append(salu(f"s_and_b32 {t1}, {tau}, 1", [tau], [t1, "scc"]))
    o.append(salu(f"s_lshl_b32 {t1}, {t1}, 3", [t1], [t1, "scc"]))
    o.append(salu(f"s_add_u32 {t0}, {t0}, {t1}", [t0, t1], [t0, "scc"]))
    o.append(valu("v_mul_u32_u24", vbo, 8*384, vg))
    o.append(valu("v_lshl_add_u32", vbo, vi, 1, vbo))
    o.append(valu("v_add_u32", vbo, t0, vbo))
    base = (vb + 5 + 3) // 4 * 4
    Af = [[V(base + (b*6+ks)*4, 4) for ks in range(6)] for b in range(2)]
    Bf = [V(base + 48 + ks*4, 4) for ks in range(6)]
    D = [V(base + 72 + b*4, 4) for b in range(2)]
    Ov = V(base + 80, 4)
    o.append(salu(f"s_movk_i32 {t1}, {4*1152}", [], [t1]))
    for ks in range(6):
        o.append(vm(bload("buffer_load_dwordx4", Af[0][ks], va, SRD_W, 0, 768 + 64*ks)))
        o.append(vm(bload("buffer_load_dwordx4", Af[1][ks], va, SRD_W, t1, 768 + 64*ks)))
        o.append(salu(f"s_mov_b32 {t0}, {32*384*ks}", [], [t0]))
        for e in range(8):
            dst = Bf[ks][e//2] if e % 2 == 0 else V(base + 84 + ks*4 + e//2)
            o.append(vm(bload("buffer_load_ushort", dst, vbo, SRD_WO, t0, 384*e)))
    for ks in range(6):
        for h in range(4):
            o.append(valu("v_lshl_or_b32", Bf[ks][h], V(base + 84 + ks*4 + h), 16, Bf[ks][h]))
    for ks in range(6):
        for b in range(2):
            o.append(mfma(D[b], Af[b][ks], Bf[ks], None if ks == 0 else D[b]))
    for b in range(2):
        o.append(cvtpk(Ov[2*b], D[b][0], D[b][1])); o.append(cvtpk(Ov[2*b+1], D[b][2], D[b][3]))
    o.append(salu(f"s_lshl_b32 {t0}, {idx_s}, 10", [idx_s], [t0, "scc"]))
    o.append(valu("v_lshlrev_b32", vt, 4, "v1"))
    o.append(vm(bstore("buffer_store_dwordx4", Ov, vt, SRD_N, t0, 0, store_flags)))
    return o

def prod_kernel():
    o = header_loads()
    o.append(salu("s_cmp_ge_u32 s2, 72", ["s2"], ["scc"]))
    o.append(raw("s_cbranch_scc1 L_pend", ["scc"]))
    o.append(valu("v_and_b32", V(1), 63, "v0"))
    o.append(wait(lgkm=0))
    o += srd(SRD_W, 6, 192*576*2) + srd(SRD_WO, 8, 192*192*2) + srd(SRD_N, 14, 72*1024)
    o += producer("s2", 8)
    o.append(label("L_pend"))
    o.append(raw("s_endpgm"))
    return finish(o)[0]

vLANE = V(1); vXO = [V(2+t) for t in range(4)]; vSO3 = V(6); vWD = V(7)
vTR = [[V(8), V(9)], [V(10), V(11)]]; vNR = [V(12), V(13)]; vND = V(14); vNINF = V(15)
TMP = lambda tq, k: V(16 + tq*4 + k)
SA = lambda tk, tq: V(32 + (tk*4+tq)*4, 4)
ACC = lambda b, t: V(96 + b*16 + t*4, 4)
QF = lambda t: V(128 + t*4, 4)
KF = lambda t: V(144 + t*4, 4)
PF = lambda tq, ks: V(160 + (tq*2+ks)*4, 4)
def UF(tau, ks):
    base = 192 + tau*8 if tau < 8 else 128 + (tau-8)*8
    return V(base + ks*4, 4)
X = lambda t, s: A_(t*24 + s*4, 4)
WB = lambda b, s: A_(96 + b*24 + s*4, 4)
sWAVE, sLDSW, sC, sMASK = "s40", "s41", "s42", S(44, 2)
sJ = ["s46", "s47", "s48"]

def stamp(k):
    return [P(raw(f"s_memtime s[{60+2*k}:{61+2*k}]", [], []), pr=["#LDS"], pw=["#LDS"])] if opt["stamps"] else []

def main_kernel():
    pre = []
    if opt["stamps"]: pre.append(raw("s_memrealtime s[56:57]")); pre.append(raw("s_memtime s[60:61]"))
    pre += header_loads()
    pre.append(salu("s_cmp_ge_u32 s2, 256", ["s2"], ["scc"]))
    pre.append(raw("s_cbranch_scc1 L_end", ["scc"]))
    t0, t1, t2, t3 = V(16), V(17), V(18), V(19)
    pre.append(valu("v_and_b32", vLANE, 63, "v0"))
    pre.append(valu("v_lshrrev_b32", t0, 6, "v0"))
    pre.append(valu("v_readfirstlane_b32", sWAVE, t0, k="rfl"))
    pre.append(salu("s_lshr_b32 s50, s2, 3", ["s2"], ["s50", "scc"]))
    pre.append(salu("s_and_b32 s51, s2, 7", ["s2"], ["s51", "scc"]))
    pre.append(salu("s_lshl_b32 s51, s51, 2", ["s51"], ["s51", "scc"]))
    pre.append(salu(f"s_add_u32 s51, s51, {sWAVE}", ["s51", sWAVE], ["s51", "scc"]))
    pre.append(salu(f"s_mul_i32 s50, s50, {7*224*384}", ["s50"], ["s50"]))
    pre.append(salu(f"s_mul_i32 s51, s51, {7*384}", ["s51"], ["s51"]))
    pre.append(salu("s_add_u32 s50, s50, s51", ["s50", "s51"], ["s50", "scc"]))
    pre.append(valu("v_and_b32", t0, 15, vLANE))
    pre.append(valu("v_lshrrev_b32", t1, 4, vLANE))
    pre.append(valu("v_lshlrev_b32", t2, 4, t1))
    pre.append(valu("v_add_u32", t2, "s50", t2))
    for t in range(3):
        pre.append(valu("v_add_u32", t3, 16*t, t0))
        pre.append(valu("v_mul_u32_u24", vXO[t], 37, t3))
        pre.append(valu("v_lshrrev_b32", vXO[t], 8, vXO[t]))
        pre.append(valu("v_mul_u32_u24", vXO[t], 217, vXO[t]))
        pre.append(valu("v_add_u32", vXO[t], vXO[t], t3))
        pre.append(valu("v_mul_u32_u24", vXO[t], 384, vXO[t]))
        pre.append(valu("v_add_u32", vXO[t], vXO[t], t2))
    pre.append(valu("v_add_u32", vXO[3], (6*224+6)*384, t2))
    pre.append(wait(lgkm=0))
    pre += srd(SRD_X, 4, XBYTES) + srd(SRD_W, 6, 192*576*2)
    for t in range(4):
        for s in range(6):
            if opt["exp"] == 3: continue
            pre.append(vm(bload("buffer_load_dwordx4", X(t, s), vXO[t], SRD_X, 0, 64*s, FLG[opt["xfl"]])))
    if opt["exp"] in (1,):
        pre.append(wait(vm=0)); pre.append(raw("s_memtime s[62:63]"))
    pre.append(valu("v_lshrrev_b32", t2, 2, vLANE))
    pre.append(valu("v_mul_u32_u24", vWD, 1152, t2))
    pre.append(valu("v_lshrrev_b32", t2, 5, vLANE))
    pre.append(valu("v_lshlrev_b32", t2, 1, t2))
    pre.append(valu("v_and_b32", t3, 3, vLANE))
    pre.append(valu("v_xor_b32", t2, t2, t3))
    pre.append(valu("v_lshl_add_u32", vWD, t2, 4, vWD))
    pre.append(salu(f"s_mul_i32 s50, {sWAVE}, {3*18432}", [sWAVE], ["s50"]))
    pre.append(valu("v_add_u32", vWD, "s50", vWD))
    pre.append(salu(f"s_mul_i32 {sLDSW}, {sWAVE}, 3072", [sWAVE], [sLDSW]))
    for jj in range(3): pre.append(salu(f"s_mov_b32 {sJ[jj]}, {jj*18432}", [], [sJ[jj]]))
    for u in range(6):
        for m in range(2):
            for jj in range(3):
                imm = m*384 + u*64
                pre.append(salu(f"s_add_u32 m0, {sLDSW}, {u*24576 + m*12288 + jj*1024 - imm}", [sLDSW], ["m0", "scc"]))
                pre.append(vm(dma(vWD, SRD_W, sJ[jj], f" offset:{imm}"), tag=f"W{u}"))
    pre += srd(SRD_O, 10, XBYTES) + srd(SRD_N, 14, 72*1024)
    if opt["exp"]:
        if opt["exp"] != 1: pre.append(wait(vm=36)); pre.append(raw("s_memtime s[62:63]"))
        pre.append(wait(vm=30)); pre.append(raw("s_memtime s[64:65]"))
    pre.append(valu("v_cmp_eq_u32", "vcc", 0, t0))
    pre.append(valu("v_mov_b32", vSO3, 0x7f000000))
    pre.append(valu("v_cndmask_b32", vSO3, vSO3, vXO[3], "vcc"))
    pre.append(valu("v_lshrrev_b32", t2, 2, t0))
    pre.append(valu("v_lshl_add_u32", t2, t1, 3, t2))
    pre.append(valu("v_lshlrev_b32", t2, 6, t2))
    pre.append(valu("v_and_b32", t3, 3, t0))
    pre.append(valu("v_lshl_add_u32", t2, t3, 3, t2))
    pre.append(valu("v_and_b32", t3, 1, t1))
    pre.append(valu("v_lshl_add_u32", vTR[0][0], t3, 5, t2))
    pre.append(valu("v_xor_b32", vTR[0][1], 32, vTR[0][0]))
    pre.append(valu("v_add_u32", vTR[1][0], 24576, vTR[0][0]))
    pre.append(valu("v_add_u32", vTR[1][1], 24576, vTR[0][1]))
    pre.append(valu("v_lshlrev_b32", vNR[0], 4, vLANE))
    pre.append(valu("v_add_u32", vNR[1], 36864, vNR[0]))
    pre.append(salu(f"s_mul_i32 s49, {sWAVE}, 6144", [sWAVE], ["s49"]))
    pre.append(valu("v_add_u32", vND, "s49", vNR[0]))
    pre.append(valu("v_mov_b32", vNINF, 0xff800000))
    c = 192 ** -0.5 * math.log2(math.e)
    import struct
    pre.append(salu(f"s_mov_b32 {sC}, 0x{struct.unpack('<I', struct.pack('<f', c))[0]:08x}", [], [sC]))
    pre.append(salu(f"s_mov_b64 {sMASK}, 0xffff", [], sMASK.regs()))
    for tq in range(4): pre.append(valu("v_mov_b32", PF(tq, 1)[3], 0))

    p = []
    def sync(tag, rdregs, after=()):
        w = I("WAIT", rdregs, [], "wait", {"tag": tag, "lgkm": 0 if rdregs else None, "vm": None})
        p.append(P(w, pr=["#LDS", "#VM"] + list(after), pw=["#LDS", "#VM"], fence=1))
        p.append(P(barrier(), pr=["#LDS"], pw=["#LDS"], fence=1))
    def wreads(u, g):
        m, a = g >> 1, g & 1
        for s in range(6):
            for h in range(2):
                p.append(P(ds_read("ds_read_b64_tr_b16", WB(g & 1, s).sub(2*h, 2), vTR[u & 1][a], m*12288 + s*2048 + h*256), pr=["#LDS"]))
    def group(u, g):
        b = g & 1
        for s in range(6):
            for t in range(4):
                i = mfma(ACC(b, t), WB(b, s), X(t, s), None if s == 0 else ACC(b, t))
                if s == 2 and t == 0: P(i, pw=[f"#g{u}_{g}"])
                p.append(i)
    def cvts(g):
        m, a = g >> 1, g & 1
        for t in range(4):
            d = (QF if m == 0 else KF)(t)
            p.append(cvtpk(d[2*a], ACC(a, t)[0], ACC(a, t)[1])); p.append(cvtpk(d[2*a+1], ACC(a, t)[2], ACC(a, t)[3]))
    def sblock(u):
        for tk in range(4):
            for tq in range(4):
                p.append(mfma(SA(tk, tq), KF(tk), QF(tq), None if u == 0 else SA(tk, tq)))
    def ndma(part):
        for half in range(2):
            off = part*24576 + half*4096
            p.append(salu(f"s_mov_b32 s50, {off}", [], ["s50"]))
            p.append(salu(f"s_add_u32 m0, s49, {off}", ["s49"], ["m0", "scc"]))
            for jj in range(4 if half == 0 else 2):
                p.append(P(vm(dma(vND, SRD_N, "s50", f" offset:{jj*1024}"), tag="N"), pr=["#LDS"]))
    def nreads(tau):
        for s in range(6):
            off = (tau*6 + s)*1024
            p.append(P(ds_read("ds_read_b128", WB(tau & 1, s), vNR[off >= 36864], off - (36864 if off >= 36864 else 0)), pr=["#LDS"]))
    def ugroup(tau):
        b = tau & 1
        for s in range(6):
            for t in range(4):
                p.append(mfma(ACC(b, t), X(t, s), WB(b, s), None if s == 0 else ACC(b, t)))
    def ucvts(tau):
        b = tau & 1
        for t in range(4):
            d = UF(tau, t >> 1)
            p.append(cvtpk(d[2*(t&1)], ACC(b, t)[0], ACC(b, t)[1])); p.append(cvtpk(d[2*(t&1)+1], ACC(b, t)[2], ACC(b, t)[3]))
    def xlane(op, m, m2):
        for sw in ("v_permlane32_swap_b32", "v_permlane16_swap_b32"):
            p.append(valu("v_mov_b32", m2, m))
            p.append(I(f"{sw} {m}, {m2}", regs_of(m, m2), regs_of(m, m2), "perm"))
            p.append(valu(op, m, m, m2))
    def softmax(tq):
        m, m2, s1, s2 = (TMP(tq, k) for k in range(4))
        vals = [SA(tk, tq)[r] for tk in range(3) for r in range(4)] + [SA(3, tq)[0]]
        L = vals[12]
        p.append(valu("v_cndmask_b32", L, vNINF, L, sMASK))
        p.append(valu("v_max3_f32", m, vals[0], vals[1], vals[2]))
        p.append(valu("v_max3_f32", m2, vals[3], vals[4], vals[5]))
        p.append(valu("v_max3_f32", m, m, vals[6], vals[7]))
        p.append(valu("v_max3_f32", m2, m2, vals[8], vals[9]))
        p.append(valu("v_max3_f32", m, m, vals[10], vals[11]))
        p.append(valu("v_max3_f32", m, m, m2, L))
        xlane("v_max_f32", m, m2)
        p.append(valu("v_mul_f32", m, sC, m))
        for v in vals:
            p.append(valu("v_fma_f32", v, v, sC, "-" + str(m)))
            p.append(valu("v_exp_f32", v, v, k="trans"))
        p.append(valu("v_add_f32", s1, vals[0], vals[1])); p.append(valu("v_add_f32", s2, vals[2], vals[3]))
        for k in range(4, 12, 2):
            p.append(valu("v_add_f32", s1, s1, vals[k])); p.append(valu("v_add_f32", s2, s2, vals[k+1]))
        p.append(valu("v_add_f32", s1, s1, L))
        p.append(valu("v_add_f32", s1, s1, s2))
        xlane("v_add_f32", s1, s2)
        p.append(valu("v_rcp_f32", s1, s1, k="trans"))
        for v in vals: p.append(valu("v_mul_f32", v, v, s1))
        for tk in range(3):
            d = PF(tq, tk >> 1)
            p.append(cvtpk(d[2*(tk&1)], vals[4*tk], vals[4*tk+1])); p.append(cvtpk(d[2*(tk&1)+1], vals[4*tk+2], vals[4*tk+3]))
        p.append(cvtpk(PF(tq, 1)[2], L, 0))
    OA = lambda b, a, tq: V(32 + b*32 + (a*4+tq)*4, 4)
    OUT = lambda k: V(16 + (k % 4)*4, 4)
    cnt = [0]
    def ogroup(v):
        b = v & 1
        for tq in range(4):
            for a in range(2):
                for ks in range(2):
                    p.append(mfma(OA(b, a, tq), UF(2*v+a, ks), PF(tq, ks), None if ks == 0 else OA(b, a, tq)))
    def ostore(v):
        b = v & 1
        for tq in range(4):
            o = OUT(cnt[0]); cnt[0] += 1
            for a in range(2):
                p.append(cvtpk(o[2*a], OA(b, a, tq)[0], OA(b, a, tq)[1])); p.append(cvtpk(o[2*a+1], OA(b, a, tq)[2], OA(b, a, tq)[3]))
            p.append(vm(bstore("buffer_store_dwordx4", o, vXO[tq] if tq < 3 else vSO3, SRD_O, 0, 64*v, FLG[opt["sfl"]])))

    sync("W0", [])
    p += stamp(1)
    wreads(0, 0)
    for u in range(6):
        wreads(u, 1); group(u, 0)
        if u > 0: cvts(3); sblock(u-1)
        wreads(u, 2); group(u, 1); cvts(0)
        wreads(u, 3); group(u, 2); cvts(1)
        gm = len(p)
        group(u, 3)
        g3 = p[gm:]; del p[gm:]
        p.extend(g3[:9])
        sync(f"W{u+1}" if u < 5 else "N", [r for s in range(6) for r in WB(1, s).regs()], after=[f"#g{u}_3"])
        if u < 3: ndma(u)
        if u < 5:
            if u < 4:
                for a in range(2): p.append(valu("v_add_u32", vTR[u & 1][a], 49152, vTR[u & 1][a]))
            wreads(u+1, 0)
        else:
            p += stamp(2)
            nreads(0)
        p.extend(g3[9:]); cvts(2)
    n1 = len([i for i in p if i.k == "mfma"])
    nreads(1); ugroup(0); cvts(3); sblock(5)
    ucvts(0)
    nsm = 4
    for tau in range(1, 12):
        if tau + 1 < 12: nreads(tau+1)
        ugroup(tau)
        if 1 <= tau <= 4: softmax(tau-1)
        ucvts(tau)
        for k in {5: [0], 6: [1], 8: [2], 9: [3], 11: [4, 5]}.get(tau, []):
            ogroup(k); ostore(k)
    n2 = n1 + 24 + 16 + 24*4
    mf = [i for i in p if i.k == "mfma"]
    mi = {id(i): n for n, i in enumerate(mf)}
    def perfn(j):
        n = mi[id(p[j])]
        return opt["per1"] if n < n1 + 40 else (opt["persm"] if n < n2 else opt["per2"])
    body, t = schedule(p, look=32, perfn=perfn)
    if opt["exp"]: body = [wait(vm=0)]
    post = []
    if opt["stamps"]:
        post.append(raw("s_memtime s[66:67]")); post.append(wait(vm=0)); post.append(raw("s_memtime s[68:69]")); post.append(raw("s_memrealtime s[58:59]"))
        post.append(wait(lgkm=0))
        post.append(salu("s_mov_b32 s30, 0x200000"))
        post.append(salu("s_lshl_b32 s50, s2, 2")); post.append(salu(f"s_add_u32 s50, s50, {sWAVE}")); post.append(salu("s_lshl_b32 s50, s50, 5")); post.append(salu("s_add_u32 s50, s50, 0x100000"))
        for k, (a, b) in enumerate([("s56", None), ("s57", None), ("s58", None), ("s59", None), ("s62", "s60"), ("s64", "s60"), ("s66", "s60"), ("s68", "s60")]):
            if b: post.append(salu(f"s_sub_u32 {a}, {a}, {b}"))
            post.append(valu("v_mov_b32", V(16+k), a))
        post.append(valu("v_mov_b32", V(24), 0))
        post.append(salu("s_mov_b64 exec, 1"))
        post.append(bstore("buffer_store_dwordx4", V(16,4), V(24), SRD_N, "s50", 0))
        post.append(bstore("buffer_store_dwordx4", V(20,4), V(24), SRD_N, "s50", 16))
    post.append(label("L_end")); post.append(raw("s_endpgm"))
    full, nn = finish(pre + body + post)
    sys.stderr.write(f"main: {len(full)} instrs, mfma {len(mf)}, est cycles {t}, nop states {nn}\n")
    return full

def kd(name, vg, acc, sg=102):
    return f""".amdhsa_kernel {name}
  .amdhsa_next_free_vgpr {vg}
  .amdhsa_next_free_sgpr {sg}
  .amdhsa_accum_offset {acc}
  .amdhsa_group_segment_fixed_size 0
  .amdhsa_kernarg_size 48
  .amdhsa_user_sgpr_count 2
  .amdhsa_user_sgpr_kernarg_segment_ptr 1
  .amdhsa_system_sgpr_workgroup_id_x 1
.end_amdhsa_kernel"""
print(f"""; swin window attention, stage A: N = Wv*Wo folded (pre-kernel), QK direct
; @launch kernel=prod_kernel grid=(72,1,1) block=(64,1,1) lds=0
; @launch kernel={KN} grid=(256,1,1) block=(256,1,1) lds=147456
.amdgcn_target "amdgcn-amd-amdhsa--gfx950"
.text
.globl prod_kernel
.p2align 8
.type prod_kernel,@function
prod_kernel:
{text(prod_kernel())}
.globl {KN}
.p2align 8
.type {KN},@function
{KN}:
{text(main_kernel())}
.section .rodata,"a"
.p2align 6
{kd("prod_kernel", 128, 128)}
.p2align 6
{kd(KN, 400, 256)}""")
```

```python
import sys, math, struct
from asmgen import *
KN = "standalone__swin_window_attn__vision_kernel"
XBYTES = 224*224*192*2
opt = dict(per1=2, per2=2, persm=3, stamps=0, xfl=1, sfl=0, mfl=2, tmo=400, nofl=0, ord=0, ptau=3, rot=1)
FLG = {0:"",1:" nt",2:" sc1",3:" sc0 sc1",4:" sc0 sc1 nt",5:" sc1 nt"}
for a in sys.argv[1:]:
    k, v = a.split("="); opt[k] = int(v)
V = lambda lo, n=1: Reg("v", lo, n)
A_ = lambda lo, n=1: Reg("a", lo, n)
S = lambda lo, n=1: Reg("s", lo, n)
def P(i, pr=(), pw=(), **kw):
    i.x["pr"] = list(i.x.get("pr", [])) + list(pr); i.x["pw"] = list(i.x.get("pw", [])) + list(pw); i.x.update(kw); return i
VMO = ["#VM"]
def vm(i, **kw): return P(i, pr=VMO, pw=VMO, **kw)
SRD_X, SRD_W, SRD_O, SRD_N, SRD_WO, SRD_D = S(16,4), S(20,4), S(24,4), S(28,4), S(32,4), S(36,4)
def srd(d, p, nbytes):
    return [salu(f"s_mov_b32 s{d.lo}, s{p}", [f"s{p}"], [f"s{d.lo}"]),
            salu(f"s_and_b32 s{d.lo+1}, s{p+1}, 0xffff", [f"s{p+1}"], [f"s{d.lo+1}", "scc"]),
            salu(f"s_mov_b32 s{d.lo+2}, {nbytes}", [], [f"s{d.lo+2}"]),
            salu(f"s_mov_b32 s{d.lo+3}, 0x20000", [], [f"s{d.lo+3}"])]
NOFF = 73728
vLANE = V(1); vXO = [V(2+t) for t in range(4)]; vSO3 = V(6); vL16 = V(7)
vNR = [V(8), V(9), V(10)]; vND = V(11); vNINF = V(15)
TMP = lambda tq, k: V(16 + tq*4 + k)
SA = lambda tk, tq: V(32 + (tk*4+tq)*4, 4)
ACC = lambda b, t: V(96 + b*16 + t*4, 4)
TF = lambda v, t: V(128 + (v & 1)*16 + t*4, 4)
PF = lambda tq, ks: V(160 + (tq*2+ks)*4, 4)
def UF(tau, ks):
    base = 192 + tau*8 if tau < 8 else 128 + (tau-8)*8
    return V(base + ks*4, 4)
X = lambda t, s: A_(t*24 + s*4, 4)
WB = lambda b, s: A_(96 + b*24 + s*4, 4)
sWAVE, sC, sMASK, sW6 = "s40", "s42", S(44, 2), "s49"
sCNT, sJOB, sLIM, sMODE, sFLAG = "s73", "s74", "s75", "s77", "s78"

SCR = 147456
pAf = [[A_(144 + (b*6+ks)*4, 4) for ks in range(6)] for b in range(2)]
pBf = [[V(176 + (a*6+ks)*4, 4) for ks in range(6)] for a in range(2)]
pD = [[V(224 + (a*2+b)*4, 4) for b in range(2)] for a in range(2)]
pO = [V(240 + a*4, 4) for a in range(2)]
sPV, sPS = "s54", "s55"
def prod_issue():
    o = []
    sv, st, t0, t1 = sPV, sPS, "s52", "s53"
    o.append(salu(f"s_mul_i32 {sv}, {sJOB}, 43", [sJOB], [sv]))
    o.append(salu(f"s_lshr_b32 {sv}, {sv}, 8", [sv], [sv, "scc"]))
    o.append(salu(f"s_mul_i32 {t0}, {sv}, 6", [sv], [t0]))
    o.append(salu(f"s_sub_u32 {st}, {sJOB}, {t0}", [sJOB, t0], [st, "scc"]))
    vi, vg, va, vb, vt = (V(16+k) for k in range(5))
    o.append(valu("v_and_b32", vi, 15, vLANE))
    o.append(valu("v_lshrrev_b32", vg, 4, vLANE))
    o.append(valu("v_lshrrev_b32", vt, 2, vi))
    o.append(valu("v_and_b32", vb, 3, vi))
    o.append(valu("v_lshl_add_u32", va, vt, 3, vb))
    o.append(valu("v_mul_u32_u24", va, 1152, va))
    o.append(valu("v_lshl_add_u32", va, vg, 4, va))
    o.append(salu(f"s_mul_i32 {t0}, {st}, {32*1152}", [st], [t0]))
    o.append(valu("v_add_u32", va, t0, va))
    o.append(valu("v_lshl_add_u32", V(21), vg, 3, vt))
    o.append(valu("v_lshlrev_b32", V(21), 6, V(21)))
    o.append(valu("v_lshl_add_u32", V(21), vb, 4, V(21)))
    o.append(valu("v_add_u32", V(21), SCR, V(21)))
    o.append(valu("v_lshrrev_b32", vt, 2, vLANE))
    o.append(valu("v_mul_u32_u24", vt, 384, vt))
    o.append(valu("v_and_b32", vb, 3, vLANE))
    o.append(valu("v_lshl_add_u32", vb, vb, 4, vt))
    o.append(salu(f"s_lshl_b32 {t0}, {sv}, 6", [sv], [t0, "scc"]))
    o.append(valu("v_add_u32", vb, t0, vb))
    o.append(salu(f"s_movk_i32 {t1}, {4*1152}", [], [t1]))
    for n in range(12):
        o.append(salu(f"s_mov_b32 {t0}, {n*16*384}", [], [t0]))
        o.append(salu(f"s_mov_b32 m0, {SCR + n*1024}", [], ["m0"]))
        o.append(vm(dma(vb, SRD_WO, t0)))
    for ks in range(6):
        for b in range(2): o.append(vm(bload("buffer_load_dwordx4", pAf[b][ks], va, SRD_W, t1 if b else 0, 768 + 64*ks)))
    return o
def prod_compute():
    o = []
    sv, st, t0, t1 = sPV, sPS, "s52", "s53"
    for ks in range(6):
        for a in range(2):
            for h in range(2):
                o.append(ds_read("ds_read_b64_tr_b16", pBf[a][ks].sub(2*h, 2), V(21), ks*2048 + h*256 + 8*a))
    for ks in range(6):
        for a in range(2):
            for b in range(2):
                o.append(mfma(pD[a][b], pAf[b][ks], pBf[a][ks], None if ks == 0 else pD[a][b]))
    o.append(salu(f"s_mul_i32 {t0}, {sv}, 12288", [sv], [t0]))
    o.append(salu(f"s_lshl_b32 {t1}, {st}, 10", [st], [t1, "scc"]))
    o.append(salu(f"s_add_u32 {t0}, {t0}, {t1}", [t0, t1], [t0, "scc"]))
    o.append(salu(f"s_add_u32 {t1}, {t0}, 6144", [t0], [t1, "scc"]))
    for a in range(2):
        for b in range(2):
            o.append(cvtpk(pO[a][2*b], pD[a][b][0], pD[a][b][1])); o.append(cvtpk(pO[a][2*b+1], pD[a][b][2], pD[a][b][3]))
        o.append(vm(bstore("buffer_store_dwordx4", pO[a], vL16, SRD_N, t1 if a else t0, 0, " sc1")))
    o.append(raw("s_nop 1"))
    return o
vPA, vPQ = V(22), V(23)
def slow_path():
    o = [label("L_slowN"), salu(f"s_movk_i32 {sCNT}, {opt['tmo']}", [], [sCNT]), label("L_pollN")]
    o.append(raw("s_sleep 4"))
    o.append(raw(f"buffer_load_dword {vPQ}, {vPA}, {SRD_D}, 0 offen sc1", regs_of(vPA, SRD_D), regs_of(vPQ), "vload_untracked"))
    o.append(raw("s_waitcnt vmcnt(0)"))
    o.append(valu("v_cmp_ne_u32", "vcc", 0x01010101, vPQ))
    o.append(salu("s_cmp_eq_u64 vcc, 0", ["vcc"], ["scc"]))
    o.append(raw("s_cbranch_scc1 L_okN", ["scc"]))
    o.append(salu(f"s_sub_u32 {sCNT}, {sCNT}, 1", [sCNT], [sCNT, "scc"]))
    o.append(raw("s_cbranch_scc0 L_pollN", ["scc"]))
    o.append(salu(f"s_mov_b32 {sJOB}, 0", [], [sJOB]))
    o.append(label("L_fb"))
    o += prod_issue() + [wait(vm=0)] + prod_compute()
    o.append(salu(f"s_add_u32 {sJOB}, {sJOB}, 1", [sJOB], [sJOB, "scc"]))
    o.append(salu(f"s_cmp_lt_u32 {sJOB}, 36", [sJOB], ["scc"]))
    o.append(raw("s_cbranch_scc1 L_fb", ["scc"]))
    o.append(wait(vm=0))
    o.append(raw("s_branch L_okN"))
    return finish(o)[0]

def stamp(k):
    return [P(raw(f"s_memtime s[{84+2*k}:{85+2*k}]", [], [], "smem"), pr=["#LDS"], pw=["#LDS"])] if opt["stamps"] else []

def main_kernel():
    pre = []
    if opt["stamps"]: pre.append(raw("s_memrealtime s[80:81]")); pre.append(raw("s_memtime s[84:85]")); pre.append(raw("s_memtime s[94:95]"))
    pre.append(raw("s_load_dwordx8 s[4:11], s[0:1], 0", ["s0","s1"], R("s",4,8), "smem"))
    pre.append(raw("s_load_dwordx4 s[12:15], s[0:1], 32", ["s0","s1"], R("s",12,4), "smem"))
    pre.append(salu("s_cmp_ge_u32 s2, 256", ["s2"], ["scc"]))
    pre.append(raw("s_cbranch_scc1 L_end", ["scc"]))
    t0, t1, t2, t3 = V(12), V(13), V(14), V(15)
    pre.append(valu("v_and_b32", vLANE, 63, "v0"))
    pre.append(valu("v_lshrrev_b32", t0, 6, "v0"))
    pre.append(valu("v_readfirstlane_b32", sWAVE, t0, k="rfl"))
    pre.append(valu("v_lshlrev_b32", vL16, 4, vLANE))
    pre.append(salu("s_lshr_b32 s50, s2, 3", ["s2"], ["s50", "scc"]))
    pre.append(salu("s_and_b32 s51, s2, 7", ["s2"], ["s51", "scc"]))
    pre.append(salu("s_lshl_b32 s51, s51, 2", ["s51"], ["s51", "scc"]))
    pre.append(salu(f"s_add_u32 s51, s51, {sWAVE}", ["s51", sWAVE], ["s51", "scc"]))
    pre.append(salu(f"s_mul_i32 s50, s50, {7*224*384}", ["s50"], ["s50"]))
    pre.append(salu(f"s_mul_i32 s51, s51, {7*384}", ["s51"], ["s51"]))
    pre.append(salu("s_add_u32 s50, s50, s51", ["s50", "s51"], ["s50", "scc"]))
    pre.append(valu("v_and_b32", t0, 15, vLANE))
    pre.append(valu("v_lshrrev_b32", t1, 4, vLANE))
    pre.append(valu("v_lshlrev_b32", t2, 4, t1))
    pre.append(valu("v_add_u32", t2, "s50", t2))
    for t in range(3):
        pre.append(valu("v_add_u32", t3, 16*t, t0))
        pre.append(valu("v_mul_u32_u24", vXO[t], 37, t3))
        pre.append(valu("v_lshrrev_b32", vXO[t], 8, vXO[t]))
        pre.append(valu("v_mul_u32_u24", vXO[t], 217, vXO[t]))
        pre.append(valu("v_add_u32", vXO[t], vXO[t], t3))
        pre.append(valu("v_mul_u32_u24", vXO[t], 384, vXO[t]))
        pre.append(valu("v_add_u32", vXO[t], vXO[t], t2))
    pre.append(valu("v_add_u32", vXO[3], (6*224+6)*384, t2))
    pre.append(salu(f"s_lshl_b32 {sJOB}, {sWAVE}, 8", [sWAVE], [sJOB, "scc"]))
    pre.append(salu(f"s_add_u32 {sJOB}, {sJOB}, s2", [sJOB, "s2"], [sJOB, "scc"]))
    vWA = V(24)
    pre.append(valu("v_lshrrev_b32", t2, 3, vLANE))
    pre.append(valu("v_mul_u32_u24", vWA, 1152, t2))
    pre.append(valu("v_and_b32", t2, 2, t2))
    pre.append(valu("v_and_b32", t3, 7, vLANE))
    pre.append(valu("v_xor_b32", t2, t2, t3))
    pre.append(valu("v_lshl_add_u32", vWA, t2, 4, vWA))
    pre.append(salu(f"s_and_b32 s51, {sWAVE}, 2", [sWAVE], ["s51", "scc"]))
    pre.append(salu("s_lshl_b32 s50, s51, 5", ["s51"], ["s50", "scc"]))
    pre.append(valu("v_xor_b32", vWA, "s50", vWA))
    pre.append(salu(f"s_mul_i32 s50, {sWAVE}, 9216", [sWAVE], ["s50"]))
    pre.append(valu("v_add_u32", vWA, "s50", vWA))
    pre.append(salu(f"s_and_b32 s51, {sWAVE}, 1", [sWAVE], ["s51", "scc"]))
    pre.append(salu(f"s_mul_i32 {sW6}, {sWAVE}, 6144", [sWAVE], [sW6]))
    sJ = [f"s{56+j}" for j in range(6)]; sL = [f"s{62+j}" for j in range(6)]
    pre.append(salu("s_lshr_b32 s50, s2, 3", ["s2"], ["s50", "scc"]))
    pre.append(salu("s_mul_i32 s52, s50, 43", ["s50"], ["s52"]))
    pre.append(salu("s_lshr_b32 s52, s52, 8", ["s52"], ["s52", "scc"]))
    pre.append(salu("s_mul_i32 s52, s52, 6", ["s52"], ["s52"]))
    pre.append(salu("s_sub_u32 s50, s50, s52", ["s50", "s52"], ["s50", "scc"]))
    if not opt["rot"]: pre.append(salu("s_mov_b32 s50, 0", [], ["s50"]))
    pre.append(salu(f"s_lshl_b32 s53, {sWAVE}, 10", [sWAVE], ["s53", "scc"]))
    for j in range(6):
        pre.append(salu(f"s_mul_i32 {sJ[j]}, s50, 36864", ["s50"], [sJ[j]]))
        pre.append(salu(f"s_lshl_b32 {sL[j]}, s50, 12", ["s50"], [sL[j], "scc"]))
        pre.append(salu(f"s_add_u32 {sL[j]}, {sL[j]}, s53", [sL[j], "s53"], [sL[j], "scc"]))
        if j < 5:
            pre.append(salu("s_add_u32 s50, s50, 1", ["s50"], ["s50", "scc"]))
            pre.append(salu("s_cmp_eq_u32 s50, 6", ["s50"], ["scc"]))
            pre.append(salu("s_cselect_b32 s50, 0, s50", ["s50", "scc"], ["s50"]))
    pre.append(wait(lgkm=0))
    pre += srd(SRD_W, 6, 192*576*2) + srd(SRD_X, 4, XBYTES) + srd(SRD_N, 14, 0x200000 if opt["stamps"] else NOFF) + srd(SRD_WO, 8, 192*192*2) + srd(SRD_D, 12, 256)
    pre.append(salu(f"s_cmp_ge_u32 {sJOB}, 36", [sJOB], ["scc"]))
    pre.append(raw("s_cbranch_scc1 L_np1", ["scc"]))
    pre += prod_issue()
    pre.append(label("L_np1"))
    pre = finish(pre)[0]
    q = []
    def wpiece(kk, m, j):
        imm = m*384 + kk*128
        return [salu(f"s_add_u32 m0, {sL[j]}, {kk*49152 + m*24576 - imm}", [sL[j]], ["m0", "scc"]),
                vm(dma(vWA, SRD_W, sJ[j], f" offset:{imm}"), tag=f"W{kk}")]
    xl = [vm(bload("buffer_load_dwordx4", X(t, s), vXO[t], SRD_X, 0, 64*s, FLG[opt["xfl"]]), tag="X") for t in range(4) for s in range(6)]
    def wmix(kk, nx):
        o = []; ws = [wpiece(kk, m, j) for m in range(2) for j in range(6)]
        done = 0
        for n, w in enumerate(ws):
            o += w
            want = (nx * (n+1) // 12) // 2 * 2
            while done < want: o.append(xl.pop(0)); done += 1
        return o
    XS = {0: (4, 6, 6), 1: (0, 6, 6), 2: (6, 6, 6), 3: (8, 8, 8), 4: (0, 0, 0), 5: (2, 4, 6)}[opt["ord"]]
    q += wmix(0, XS[0]) + wmix(1, XS[1])
    nq = len([i for i in q if i.k in ("dma", "vload")])
    assert nq + 24 <= 63
    q += srd(SRD_O, 10, XBYTES)
    q.append(valu("v_cmp_eq_u32", "vcc", 0, t0))
    q.append(valu("v_mov_b32", vSO3, 0x7f000000))
    q.append(valu("v_cndmask_b32", vSO3, vSO3, vXO[3], "vcc"))
    q.append(valu("v_mov_b32", vNR[0], vL16))
    q.append(valu("v_add_u32", vNR[1], 49152, vL16))
    q.append(valu("v_add_u32", vNR[2], 98304, vL16))
    q.append(valu("v_add_u32", vND, sW6, vL16))
    q.append(valu("v_min_u32", vPA, 8, vLANE)); q.append(valu("v_lshlrev_b32", vPA, 2, vPA))
    vRA = [V(26), V(27)]; vRB = [V(28), V(29)]; vMW = V(30)
    q.append(valu("v_lshrrev_b32", t2, 2, t0))
    q.append(valu("v_and_b32", t3, 3, t0))
    q.append(valu("v_lshl_add_u32", t2, t2, 3, t3))
    q.append(valu("v_lshlrev_b32", vRA[0], 7, t2))
    q.append(valu("v_and_b32", t2, 2, t0))
    q.append(valu("v_xor_b32", t2, t2, t1))
    q.append(valu("v_lshrrev_b32", t3, 1, t0))
    q.append(valu("v_and_b32", t3, 4, t3))
    q.append(valu("v_xor_b32", t2, t2, t3))
    q.append(valu("v_lshl_add_u32", vRA[0], t2, 4, vRA[0]))
    q.append(valu("v_xor_b32", vRA[1], 64, vRA[0]))
    q.append(salu(f"s_lshr_b32 s50, {sWAVE}, 1", [sWAVE], ["s50", "scc"]))
    q.append(salu(f"s_mul_i32 s52, s50, {96*128}", ["s50"], ["s52"]))
    q.append(salu("s_add_u32 s52, s52, 24576", ["s52"], ["s52", "scc"]))
    q.append(salu(f"s_mul_i32 s53, s51, {96*128}", ["s51"], ["s53"]))
    q.append(valu("v_add_u32", vRB[0], "s52", vRA[0])); q.append(valu("v_add_u32", vRB[1], "s52", vRA[1]))
    q.append(valu("v_add_u32", vRA[0], "s53", vRA[0])); q.append(valu("v_add_u32", vRA[1], "s53", vRA[1]))
    q.append(salu("s_mul_i32 s52, s50, 36864", ["s50"], ["s52"]))
    q.append(salu("s_mul_i32 s53, s51, 3072", ["s51"], ["s53"]))
    q.append(salu("s_add_u32 s52, s52, s53", ["s52", "s53"], ["s52", "scc"]))
    q.append(valu("v_add_u32", vMW, "s52", vL16))
    q.append(valu("v_mov_b32", vNINF, 0xff800000))
    c = 192 ** -0.5 * math.log2(math.e)
    q.append(salu(f"s_mov_b32 {sC}, 0x{struct.unpack('<I', struct.pack('<f', c))[0]:08x}", [], [sC]))
    q.append(salu(f"s_mov_b64 {sMASK}, 0xffff", [], sMASK.regs()))
    q.append(salu(f"s_cmp_ge_u32 {sJOB}, 36", [sJOB], ["scc"]))
    q.append(raw("s_cbranch_scc1 L_np2", ["scc"]))
    q.append(raw(f"s_waitcnt vmcnt({nq})"))
    pc = finish(prod_compute())[0]
    q.append(raw(text(pc).strip() + "\nL_np2:", [], []))
    q += stamp(1)

    p = []
    def sync(tag, rdregs, after=(), lg=None):
        w = I("WAIT", rdregs, [], "wait", {"tag": tag, "lgkm": lg, "vm": None})
        p.append(P(w, pr=["#LDS", "#VM"] + list(after), pw=["#LDS", "#VM"], fence=1))
        p.append(P(barrier(), pr=["#LDS"], pw=["#LDS"], fence=1))
    def wdma(base, part, tag, out):
        for half in range(2):
            off = part*24576 + half*4096
            out.append(salu(f"s_mov_b32 s50, {off}", [], ["s50"]))
            out.append(salu(f"s_add_u32 m0, {sW6}, {off + base}", [sW6], ["m0", "scc"]))
            for jj in range(4 if half == 0 else 2):
                out.append(vm(dma(vND, SRD_N, "s50", f" offset:{jj*1024}" + FLG[opt["mfl"]]), tag=tag))
    def reads(n):
        for s in range(6):
            off = (n*6 + s)*1024
            p.append(P(ds_read("ds_read_b128", WB(n & 1, s), vNR[off // 49152], off % 49152), pr=["#LDS"]))
    def tgroup(tau):
        b = tau & 1
        for s in range(6):
            for t in range(4):
                i = mfma(ACC(b, t), WB(b, s), X(t, s), None if s == 0 else ACC(b, t))
                if s == 2 and t == 0: P(i, pw=[f"#g{tau}"])
                p.append(i)
    def tcvts(tau):
        a = tau & 1
        for t in range(4):
            d = TF(tau >> 1, t)
            p.append(cvtpk(d[2*a], ACC(a, t)[0], ACC(a, t)[1])); p.append(cvtpk(d[2*a+1], ACC(a, t)[2], ACC(a, t)[3]))
    def sblock(v):
        for tq in range(4):
            for tk in range(4):
                p.append(mfma(SA(tk, tq), X(tk, v), TF(v, tq), None if v == 0 else SA(tk, tq)))
    def ugroup(tau):
        b = tau & 1
        for s in range(6):
            for t in range(4):
                p.append(mfma(ACC(b, t), X(t, s), WB(b, s), None if s == 0 else ACC(b, t)))
    def ucvts(tau):
        b = tau & 1
        for t in range(4):
            d = UF(tau, t >> 1)
            p.append(cvtpk(d[2*(t&1)], ACC(b, t)[0], ACC(b, t)[1])); p.append(cvtpk(d[2*(t&1)+1], ACC(b, t)[2], ACC(b, t)[3]))
    def xlane(op, m, m2):
        for sw in ("v_permlane32_swap_b32", "v_permlane16_swap_b32"):
            p.append(valu("v_mov_b32", m2, m))
            p.append(I(f"{sw} {m}, {m2}", regs_of(m, m2), regs_of(m, m2), "perm"))
            p.append(valu(op, m, m, m2))
    def softmax(tq):
        m, m2, s1, s2 = (TMP(tq, k) for k in range(4))
        vals = [SA(tk, tq)[r] for tk in range(3) for r in range(4)] + [SA(3, tq)[0]]
        L = vals[12]
        p.append(valu("v_cndmask_b32", L, vNINF, L, sMASK))
        p.append(valu("v_max3_f32", m, vals[0], vals[1], vals[2]))
        p.append(valu("v_max3_f32", m2, vals[3], vals[4], vals[5]))
        p.append(valu("v_max3_f32", m, m, vals[6], vals[7]))
        p.append(valu("v_max3_f32", m2, m2, vals[8], vals[9]))
        p.append(valu("v_max3_f32", m, m, vals[10], vals[11]))
        p.append(valu("v_max3_f32", m, m, m2, L))
        xlane("v_max_f32", m, m2)
        p.append(valu("v_mul_f32", m, sC, m))
        for v in vals:
            p.append(valu("v_fma_f32", v, v, sC, "-" + str(m)))
            p.append(valu("v_exp_f32", v, v, k="trans"))
        p.append(valu("v_add_f32", s1, vals[0], vals[1])); p.append(valu("v_add_f32", s2, vals[2], vals[3]))
        for k in range(4, 12, 2):
            p.append(valu("v_add_f32", s1, s1, vals[k])); p.append(valu("v_add_f32", s2, s2, vals[k+1]))
        p.append(valu("v_add_f32", s1, s1, L))
        p.append(valu("v_add_f32", s1, s1, s2))
        xlane("v_add_f32", s1, s2)
        p.append(valu("v_rcp_f32", s1, s1, k="trans"))
        for v in vals: p.append(valu("v_mul_f32", v, v, s1))
        for tk in range(3):
            d = PF(tq, tk >> 1)
            p.append(cvtpk(d[2*(tk&1)], vals[4*tk], vals[4*tk+1])); p.append(cvtpk(d[2*(tk&1)+1], vals[4*tk+2], vals[4*tk+3]))
        p.append(cvtpk(PF(tq, 1)[2], L, 0))
        p.append(valu("v_mov_b32", PF(tq, 1)[3], 0))
    OA = lambda b, a, tq: V(32 + b*32 + (a*4+tq)*4, 4)
    OUT = lambda k: V(16 + (k % 4)*4, 4)
    cnt = [0]
    def ogroup(v):
        b = v & 1
        for tq in range(4):
            for a in range(2):
                for ks in range(2):
                    p.append(mfma(OA(b, a, tq), UF(2*v+a, ks), PF(tq, ks), None if ks == 0 else OA(b, a, tq)))
    def ostore(v):
        b = v & 1
        for tq in range(4):
            o = OUT(cnt[0]); cnt[0] += 1
            for a in range(2):
                p.append(cvtpk(o[2*a], OA(b, a, tq)[0], OA(b, a, tq)[1])); p.append(cvtpk(o[2*a+1], OA(b, a, tq)[2], OA(b, a, tq)[3]))
            p.append(vm(bstore("buffer_store_dwordx4", o, vXO[tq] if tq < 3 else vSO3, SRD_O, 0, 64*v, FLG[opt["sfl"]])))
    PRODREGS = R("v", 176, 72) + R("v", 16, 6) + ["v23"] + R("s", 52, 4) + ["vcc", "m0"]
    FA = lambda buf, sp, b: A_(96 + buf*48 + (sp*2+b)*4, 4)
    FB = lambda buf, vp, a: A_(96 + buf*48 + 24 + (vp*2+a)*4, 4)
    MD = lambda vp, a, sp, b: V(32 + (((vp*2+a)*3+sp)*2+b)*4, 4)
    def mreads(ks):
        kk, kh = ks >> 1, ks & 1
        base = 49152 if kk == 1 else 0
        for x in range(3):
            for y in range(2):
                p.append(P(ds_read("ds_read_b128", FA(ks & 1, x, y), vRA[kh], base + x*4096 + y*512), pr=["#LDS"]))
                p.append(P(ds_read("ds_read_b128", FB(ks & 1, x, y), vRB[kh], base + x*4096 + y*512), pr=["#LDS"]))
    def mgroup(ks):
        for vp in range(3):
            for a in range(2):
                for sp in range(3):
                    for b in range(2):
                        p.append(mfma(MD(vp, a, sp, b), FA(ks & 1, sp, b), FB(ks & 1, vp, a), None if ks == 0 else MD(vp, a, sp, b)))
    allF = [r for buf in range(2) for r in A_(96 + buf*48, 48).regs()]
    fl = "" if opt["nofl"] else f"buffer_store_byte v16, v17, {SRD_D}, {sJOB} offen sc1\n    "
    st = "s_memtime s[94:95]\n    " if opt["stamps"] else ""
    flag = P(raw(f"s_cmp_ge_u32 {sJOB}, 36\n    s_cbranch_scc1 L_np3\n    v_mov_b32 v16, 1\n    v_mov_b32 v17, 0\n    s_mov_b64 exec, 1\n    {fl}{st}s_mov_b64 exec, -1\nL_np3:", [sJOB], ["scc", "v16", "v17"]), pr=["#LDS", "#VM"], pw=["#LDS", "#VM"], fence=1)
    sync("W0", []); mreads(0); mreads(1)
    p.extend(wmix(2, XS[2])); mgroup(0)
    sync("W1", []); mreads(2)
    p.extend(xl); mgroup(1); mreads(3); mgroup(2)
    sync("W2", allF, lg=0)
    p.append(flag)
    for r in vRA + vRB: p.append(valu("v_add_u32", r, 98304, r))
    mreads(4); mgroup(3); mreads(5); mgroup(4); mgroup(5)
    k = 0
    for vp in range(3):
        for a in range(2):
            for sp in range(3):
                o = V(176 + (k % 6)*4, 4); k += 1
                for b in range(2):
                    p.append(cvtpk(o[2*b], MD(vp,a,sp,b)[0], MD(vp,a,sp,b)[1])); p.append(cvtpk(o[2*b+1], MD(vp,a,sp,b)[2], MD(vp,a,sp,b)[3]))
                p.append(P(ds_write("ds_write_b128", vMW, o, vp*12288 + a*6144 + sp*1024), pr=["#LDS"], pw=["#MW"]))
    n0 = len([i for i in p if i.k == "mfma"])
    p.append(P(wait(lgkm=0), pr=["#LDS", "#MW"], pw=["#LDS"], fence=1))
    p.append(P(barrier(), pr=["#LDS"], pw=["#LDS"], fence=1))
    p += stamp(2)
    reads(0)
    PT = opt["ptau"]
    for tau in range(12):
        last = tau == 11
        if not last: reads(tau+1)
        gm = len(p); tgroup(tau); g = p[gm:]; del p[gm:]
        if tau == PT - 1:
            p.append(P(vm(bload("buffer_load_dword", vPQ, vPA, SRD_D, 0, 0, " sc1")), pr=[f"#g{tau-1}"]))
        if tau == PT or last:
            p.extend(g[:9])
            if tau == PT:
                p.append(P(valu("v_cmp_ne_u32", "vcc", 0x01010101, vPQ), pr=[f"#g{tau}"], fence=1))
                p.append(P(salu("s_cmp_eq_u64 vcc, 0", ["vcc"], ["scc"]), fence=1))
                p.append(P(salu(f"s_cselect_b32 s52, 1, {sWAVE}", ["scc", sWAVE], ["s52"]), fence=1))
                p.append(P(salu("s_cmp_eq_u32 s52, 0", ["s52"], ["scc"]), fence=1))
                p.append(P(raw("s_cbranch_scc1 L_slowN\nL_okN:", ["scc"], PRODREGS), pr=["#LDS", "#VM"], pw=["#LDS", "#VM"], fence=1))
                p.append(P(barrier(), pr=["#LDS"], pw=["#LDS", "#VM"], fence=1))
                for part in range(3): wdma(NOFF, part, "N", p)
            else:
                sync("N", [], after=[f"#g{tau}"])
                p += stamp(3)
                reads(tau+1)
            p.extend(g[9:])
        else: p.extend(g)
        if tau > 0: tcvts(tau-1)
        if tau >= 2 and tau % 2 == 0: sblock(tau//2 - 1)
    n1 = len([i for i in p if i.k == "mfma"])
    reads(13); ugroup(0); tcvts(11); sblock(5)
    ucvts(0)
    for tau in range(1, 12):
        if tau + 1 < 12: reads(12+tau+1)
        ugroup(tau)
        if 1 <= tau <= 4: softmax(tau-1)
        ucvts(tau)
        for k in {5: [0], 6: [1], 8: [2], 9: [3], 11: [4, 5]}.get(tau, []):
            ogroup(k); ostore(k)
    n2 = n1 + 24 + 16 + 24*4
    mf = [i for i in p if i.k == "mfma"]
    mi = {id(i): n for n, i in enumerate(mf)}
    def perfn(j):
        n = mi[id(p[j])]
        return opt["per1"] if n < n1 + 40 else (opt["persm"] if n < n2 else opt["per2"])
    body, t = schedule(p, look=32, perfn=perfn)
    post = []
    if opt["stamps"]:
        post.append(raw("s_memtime s[92:93]")); post.append(raw("s_memrealtime s[82:83]"))
        post.append(wait(lgkm=0))
        post.append(salu("s_lshl_b32 s50, s2, 2")); post.append(salu(f"s_add_u32 s50, s50, {sWAVE}")); post.append(salu("s_lshl_b32 s50, s50, 5")); post.append(salu("s_add_u32 s50, s50, 0x100000"))
        for k, (a, b) in enumerate([("s80", None), ("s81", None), ("s82", None), ("s94", "s84"), ("s86", "s84"), ("s88", "s84"), ("s90", "s84"), ("s92", "s84")]):
            if b: post.append(salu(f"s_sub_u32 {a}, {a}, {b}"))
            post.append(valu("v_mov_b32", V(96+k), a))
        post.append(valu("v_mov_b32", V(104), 0))
        post.append(salu("s_mov_b64 exec, 1"))
        post.append(bstore("buffer_store_dwordx4", V(96,4), V(104), SRD_N, "s50", 0))
        post.append(bstore("buffer_store_dwordx4", V(100,4), V(104), SRD_N, "s50", 16))
    post.append(label("L_end")); post.append(raw("s_endpgm"))
    full, nn = finish(q + body + post)
    tail = slow_path()
    sys.stderr.write(f"main: {len(full)} instrs, mfma {len(mf)}, est cycles {t}, nop states {nn}\n")
    return pre + full + tail

print(f"""; swin window attention: M = Wq*Wk^T computed per workgroup while x streams in; N = Wv*Wo computed once by 36 producer
; @launch grid=(256,1,1) block=(256,1,1) lds=159744
.amdgcn_target "amdgcn-amd-amdhsa--gfx950"
.text
.globl {KN}
.p2align 8
.type {KN},@function
{KN}:
{text(main_kernel())}
.section .rodata,"a"
.p2align 6
.amdhsa_kernel {KN}
  .amdhsa_next_free_vgpr 448
  .amdhsa_next_free_sgpr 102
  .amdhsa_accum_offset 256
  .amdhsa_group_segment_fixed_size 0
  .amdhsa_kernarg_size 48
  .amdhsa_user_sgpr_count 2
  .amdhsa_user_sgpr_kernarg_segment_ptr 1
  .amdhsa_system_sgpr_workgroup_id_x 1
.end_amdhsa_kernel""")
```

```python
import re
def R(p, lo, n=1):
    return [f"{p}{lo+i}" for i in range(n)]
def rng(p, lo, n):
    return f"{p}{lo}" if n == 1 else f"{p}[{lo}:{lo+n-1}]"

class I:
    __slots__ = ("t", "rd", "wr", "k", "x")
    def __init__(s, t, rd=(), wr=(), k="valu", x=None):
        s.t = t; s.rd = set(rd); s.wr = set(wr); s.k = k; s.x = x or {}
    def __repr__(s): return s.t

VALU_KINDS = ("valu", "trans", "perm", "rfl")
def is_valu(i): return i.k in VALU_KINDS

class Reg:
    def __init__(s, p, lo, n): s.p = p; s.lo = lo; s.n = n
    def __str__(s): return rng(s.p, s.lo, s.n)
    def regs(s): return R(s.p, s.lo, s.n)
    def sub(s, o, n=1):
        assert o + n <= s.n
        return Reg(s.p, s.lo + o, n)
    def __getitem__(s, o): return s.sub(o, 1)

def regs_of(*xs):
    o = []
    for x in xs:
        if isinstance(x, Reg): o += x.regs()
        elif isinstance(x, str) and re.fullmatch(r"-?(v|a|s)\d+|vcc|exec|m0|scc", x): o.append(x.lstrip('-'))
    return o

def mfma(d, a, b, c):
    cs = "0" if c is None else str(c)
    return I(f"v_mfma_f32_16x16x32_bf16 {d}, {a}, {b}, {cs}", regs_of(a, b) + (regs_of(c) if c is not None else []), regs_of(d), "mfma",
             {"c": set(regs_of(c)) if c is not None else set(), "ab": set(regs_of(a, b))})
def valu(op, d, *src, k="valu", extra_rd=(), extra_wr=()):
    return I(f"{op} {d}, " + ", ".join(str(x) for x in src), regs_of(*src) + list(extra_rd), regs_of(d) + list(extra_wr), k)
def cvtpk(d, a, b): return valu("v_cvt_pk_bf16_f32", d, a, b)
def salu(t, rd=(), wr=()): return I(t, rd, wr, "salu")
def ds_read(op, d, addr, off):
    return I(f"{op} {d}, {addr} offset:{off}", regs_of(addr), regs_of(d), "ds_read")
def ds_write(op, addr, src, off):
    return I(f"{op} {addr}, {src} offset:{off}", regs_of(addr, src), [], "ds_write")
def bload(op, d, voff, srd, soff, off, flags=""):
    return I(f"{op} {d}, {voff}, {srd}, {soff} offen offset:{off}{flags}", regs_of(voff, srd, soff) + (regs_of(d) if "d16" in op else []), regs_of(d), "vload")
def bstore(op, src, voff, srd, soff, off, flags=""):
    return I(f"{op} {src}, {voff}, {srd}, {soff} offen offset:{off}{flags}", regs_of(src, voff, srd, soff), [], "vstore", {"data": set(regs_of(src)), "wide": src.n >= 3})
def dma(voff, srd, soff, flags=""):
    return I(f"buffer_load_dwordx4 {voff}, {srd}, {soff} offen{flags} lds", regs_of(voff, srd, soff) + ["m0"], [], "dma")
def wait(vm=None, lgkm=None):
    t = "s_waitcnt" + (f" vmcnt({vm})" if vm is not None else "") + (f" lgkmcnt({lgkm})" if lgkm is not None else "")
    return I(t, k="wait", x={"vm": vm, "lgkm": lgkm})
def barrier(): return I("s_barrier", k="salu")
def label(n): return I(f"{n}:", k="label")
def raw(t, rd=(), wr=(), k="salu"): return I(t, rd, wr, k)

def insert_waits(ins):
    out = []; vm = []; lg = []; tags = {}; keep = []
    for i in ins:
        if i.k == "wait" and "tag" in i.x:
            nv = None
            for j, d in enumerate(vm):
                if tags.get(id(d)) == i.x["tag"]: nv = len(vm) - 1 - j
            w = wait(nv, i.x["lgkm"]) if (nv is not None or i.x["lgkm"] is not None) else None
            if w is None: continue
            i = w
        if i.k == "wait":
            if i.x["vm"] is not None: vm = vm[len(vm) - i.x["vm"]:] if i.x["vm"] < len(vm) else vm
            if i.x["lgkm"] is not None: lg = lg[len(lg) - i.x["lgkm"]:] if i.x["lgkm"] < len(lg) else lg
            if i.x["vm"] == 0: vm = []
            if i.x["lgkm"] == 0: lg = []
            out.append(i); continue
        touch = i.rd | i.wr
        nv = nl = None
        for j, d in enumerate(vm):
            if d & touch: nv = len(vm) - 1 - j
        for j, d in enumerate(lg):
            if d & touch: nl = len(lg) - 1 - j
        if i.k == "vload" and "d16" in i.t and nv is not None:
            nv2 = None
            for j, d in enumerate(vm):
                if d & (i.rd - i.wr): nv2 = len(vm) - 1 - j
            nv = nv2
        if nv is not None or nl is not None:
            if nv is not None: assert nv <= 63; vm = vm[len(vm) - nv:] if nv else []
            if nl is not None:
                nl = min(nl, 15); lg = lg[len(lg) - nl:] if nl else []
            out.append(wait(nv, nl))
        if i.k in ("vload", "vstore", "dma", "vatomic"):
            d = set(i.wr); vm.append(d); tags[id(d)] = i.x.get("tag"); keep.append(d)
        elif i.k == "ds_read": lg.append(set(i.wr))
        elif i.k == "ds_write": lg.append(set())
        assert len(vm) <= 63, "vmcnt overflow"
        out.append(i)
    return out

def need(p, c):
    n = 0
    pv = {r for r in p.wr if r[0] in "va" and r != "vcc"}
    ps = {r for r in p.wr if r[0] == "s" or r == "vcc"}
    if is_valu(p):
        if c.k == "mfma" and pv & c.rd: n = max(n, 2)
        if c.k == "perm" and pv & c.rd: n = max(n, 2)
        if c.k == "rfl" and pv & c.rd: n = max(n, 1)
        if p.k == "trans" and c.k != "trans" and (is_valu(c) or c.k=="mfma") and pv & c.rd: n = max(n, 1)
        if ps:
            if is_valu(c) and ps & c.rd: n = max(n, 2)
            if c.k in ("vload", "vstore", "dma", "vatomic") and ps & c.rd: n = max(n, 5)
            if c.k == "salu" and ps & c.rd: n = max(n, 1)
        if "exec" in p.wr: n = max(n, 5)
    if p.k == "mfma":
        if c.k == "mfma":
            if pv & c.x["ab"]: n = max(n, 8)
            if pv & c.x["c"] and pv != c.x["c"]: n = max(n, 6)
            if pv & c.wr and pv != c.x["c"]: n = max(n, 6)
        elif c.k != "wait" and c.k != "salu" and c.k != "label":
            if pv & (c.rd | c.wr): n = max(n, 8)
        if is_valu(c) and p.x["c"] & c.wr: n = max(n, 3)
    if p.k == "vstore" and p.x.get("wide") and (p.x["data"] & c.wr): n = max(n, 2)
    if p.k == "salu" and "m0" in p.wr and c.k == "dma": n = max(n, 1)
    return n

def insert_nops(ins):
    out = []; nn = 0
    for c in ins:
        if c.k in ("label",): out.append(c); continue
        dist = 0; req = 0
        for p in reversed(out[-24:]):
            if p.k == "label": continue
            r = need(p, c) - dist
            req = max(req, r)
            dist += p.x.get("ws", 1) if p.k == "nop" else 1
            if dist >= 10: break
        if req > 0:
            out.append(I(f"s_nop {req-1}", k="nop", x={"ws": req})); nn += req
        out.append(c)
    return out, nn

def interleave(ms, fs, per=2, start=0):
    out = []; q = list(fs);
    for n, m in enumerate(ms):
        out.append(m)
        if n < start: continue
        c = 0
        while q and c < per:
            f = q[0]
            if isinstance(f, tuple):
                if f[1] > n: break
                f = f[0]
            out.append(f); q.pop(0); c += (2 if f.k == "trans" else 1)
    for f in q: out.append(f[0] if isinstance(f, tuple) else f)
    return out

def finish(ins):
    a = insert_waits(ins)
    b, nn = insert_nops(a)
    return b, nn
def text(ins): return "\n".join(("" if i.k == "label" else "    ") + i.t for i in ins)

LAT = {"mfma": 44, "ds_read": 160, "valu": 8, "trans": 12, "perm": 8, "vload": 0, "salu": 4, "rfl": 12}
TC = [8, 0]
def schedule(prog, per=2, look=24, perfn=None):
    n = len(prog)
    lastw = {}; readers = {}
    deps = [set() for _ in range(n)]; raw_ = [set() for _ in range(n)]
    for j, i in enumerate(prog):
        RD = i.rd | set(i.x.get("pr", ())); WR = i.wr | set(i.x.get("pw", ()))
        for r in RD:
            if r in lastw:
                deps[j].add(lastw[r])
                if r[0] != '#': raw_[j].add(lastw[r])
        for r in WR:
            if r in lastw:
                deps[j].add(lastw[r])
                if prog[lastw[r]].k in ("mfma","ds_read") and r[0] != '#': raw_[j].add(lastw[r])
            for k in readers.get(r, ()):
                if k != j: deps[j].add(k)
        for r in RD: readers.setdefault(r, []).append(j)
        for r in WR: lastw[r] = j; readers[r] = []
    M = [j for j in range(n) if prog[j].k == "mfma"]
    F = [j for j in range(n) if prog[j].k != "mfma"]
    done = [None] * n
    pos = [0] * n
    out = []; t = 0; lastm = -100; mi = 0
    def depsok(j): return all(done[d] is not None for d in deps[j])
    def ready(j, now):
        if not depsok(j): return False
        for d in deps[j]:
            if len(out) - pos[d] < 10 and need(prog[d], prog[j]) > len(out) - pos[d] - 1: return False
        for d in raw_[j]:
            p = prog[d]
            if p.k == "mfma" and prog[j].k == "mfma" and (p.wr == prog[j].x["c"]) and not (p.wr & prog[j].x["ab"]): continue
            if done[d] + LAT.get(p.k, 0) > now: return False
        return True
    def cost(i): return TC[0] if i.k == "trans" else (0 if i.k == "label" else 4)
    def emit(j):
        nonlocal t, lastm
        i = prog[j]
        if i.k == "mfma":
            t = max(t, lastm + 16); lastm = t; done[j] = t; t += 8
        else:
            done[j] = t; t += cost(i)
        pos[j] = len(out); out.append(i)
    def pickF(now, room=99):
        c = 0
        for idx in range(len(F)):
            j = F[idx]
            if prog[j].x.get("bg"): continue
            if ready(j, now): return idx
            c += 1
            if prog[j].x.get("fence") or c >= look: break
        c = 0
        for idx in range(len(F)):
            j = F[idx]
            if prog[j].x.get("fence"): break
            if not prog[j].x.get("bg"): continue
            if ready(j, now) and cost(prog[j]) / 4 <= room: return idx
            c += 1
            if c >= 10: break
        return None
    while mi < len(M) or F:
        if mi < len(M) and ready(M[mi], max(t, lastm + 16)):
            emit(M[mi]); mi += 1
            p = perfn(M[mi-1]) if perfn else per
            b = 0
            while F and b < p:
                idx = pickF(t, p - b)
                if idx is None: break
                if TC[1] and b > 0 and b + cost(prog[F[idx]]) / 4 > p: break
                j = F.pop(idx); b += cost(prog[j]) / 4; emit(j)
            continue
        idx = pickF(t) if F else None
        if idx is not None:
            emit(F.pop(idx)); continue
        if mi < len(M) and depsok(M[mi]):
            emit(M[mi]); mi += 1; continue
        for idx in range(len(F)):
            if depsok(F[idx]): emit(F.pop(idx)); break
        else:
            raise RuntimeError("deadlock in scheduler")
    return out, t
```

```python
import sys, math, struct
from asmgen import *
KN = "standalone__swin_window_attn__vision_kernel"
XBYTES = 224*224*192*2
opt = dict(per1=2, per2=2, persm=2, stamps=0, xfl=1, sfl=0, mfl=2, tmo=400, nofl=0, ord=0, ptau=1, rot=1, nost=0, tc=8, strict=1, early=1, xe=1, xo=2, ld1=1, ld2=20, ne=2, xw=12, pf=1, t3a=3, t3s=1, nb=7, seq=15, wb=0, wbn=8, st6=5, st7=8, st8=11)
FLG = {0:"",1:" nt",2:" sc1",3:" sc0 sc1",4:" sc0 sc1 nt",5:" sc1 nt"}
for a in sys.argv[1:]:
    k, v = a.split("="); opt[k] = int(v)
import asmgen
asmgen.TC[0] = opt["tc"]; asmgen.TC[1] = opt["strict"]
V = lambda lo, n=1: Reg("v", lo, n)
A_ = lambda lo, n=1: Reg("a", lo, n)
S = lambda lo, n=1: Reg("s", lo, n)
def P(i, pr=(), pw=(), **kw):
    i.x["pr"] = list(i.x.get("pr", [])) + list(pr); i.x["pw"] = list(i.x.get("pw", [])) + list(pw); i.x.update(kw); return i
VMO = ["#VM"]
def vm(i, **kw): return P(i, pr=VMO, pw=VMO, **kw)
SRD_X, SRD_W, SRD_O, SRD_N, SRD_WO, SRD_D = S(16,4), S(20,4), S(24,4), S(28,4), S(32,4), S(36,4)
def srd(d, p, nbytes):
    return [salu(f"s_mov_b32 s{d.lo}, s{p}", [f"s{p}"], [f"s{d.lo}"]),
            salu(f"s_and_b32 s{d.lo+1}, s{p+1}, 0xffff", [f"s{p+1}"], [f"s{d.lo+1}", "scc"]),
            salu(f"s_mov_b32 s{d.lo+2}, {nbytes}", [], [f"s{d.lo+2}"]),
            salu(f"s_mov_b32 s{d.lo+3}, 0x20000", [], [f"s{d.lo+3}"])]
NOFF = 73728
MOFF = 81920
vLANE = V(1); vXO = [V(2+t) for t in range(4)]; vSO3 = V(6); vL16 = V(7)
vNR = [V(8), V(9), V(10)]; vND = V(11); vNINF = V(15)
TMP = lambda tq, k: V(16 + (tq & 1)*4 + k)
WB3 = lambda s: A_(144 + s*4, 4)
TF3 = lambda v: A_(168 + v*4, 4)
vM3, vE, vR8 = V(25), V(26), V(27)
T3B, U3D = 73728, 81920
SA = lambda tk, tq: V(32 + (tk*4+tq)*4, 4)
ACC = lambda b, t: V(96 + b*16 + t*4, 4)
TF = lambda v, t: V(128 + (v & 1)*16 + t*4, 4)
PF = lambda tq, ks: V(160 + (tq*2+ks)*4, 4)
def UF(tau, ks):
    base = 192 + tau*8 if tau < 8 else 128 + (tau-8)*8
    return V(base + ks*4, 4)
X = lambda t, s: A_(t*24 + s*4, 4)
WB = lambda b, s: A_(96 + b*24 + s*4, 4)
sWAVE, sC, sMASK, sW6 = "s40", "s42", S(44, 2), "s49"
sCNT, sJOB, sLIM, sMODE, sFLAG = "s73", "s74", "s75", "s77", "s78"

SCR = 147456
pAf = [[A_(144 + (b*6+ks)*4, 4) for ks in range(6)] for b in range(2)]
pBf = [[V(176 + (a*6+ks)*4, 4) for ks in range(6)] for a in range(2)]
pD = [[V(224 + (a*2+b)*4, 4) for b in range(2)] for a in range(2)]
pO = [V(240 + a*4, 4) for a in range(2)]
sPV, sPS = "s54", "s55"
def scr_off(fb, n): return (n*1024 if n < 10 else 43008 + (n-10)*1024) if fb else n*1024
def prod_issue(fb=0):
    SB = 0 if fb else SCR
    o = []
    sv, st, t0, t1 = sPV, sPS, "s52", "s53"
    o.append(salu(f"s_mul_i32 {sv}, {sJOB}, 43", [sJOB], [sv]))
    o.append(salu(f"s_lshr_b32 {sv}, {sv}, 8", [sv], [sv, "scc"]))
    o.append(salu(f"s_mul_i32 {t0}, {sv}, 6", [sv], [t0]))
    o.append(salu(f"s_sub_u32 {st}, {sJOB}, {t0}", [sJOB, t0], [st, "scc"]))
    vi, vg, va, vb, vt = (V(16+k) for k in range(5))
    o.append(valu("v_and_b32", vi, 15, vLANE))
    o.append(valu("v_lshrrev_b32", vg, 4, vLANE))
    o.append(valu("v_lshrrev_b32", vt, 2, vi))
    o.append(valu("v_and_b32", vb, 3, vi))
    o.append(valu("v_lshl_add_u32", va, vt, 3, vb))
    o.append(valu("v_mul_u32_u24", va, 1152, va))
    o.append(valu("v_lshl_add_u32", va, vg, 4, va))
    o.append(salu(f"s_mul_i32 {t0}, {st}, {32*1152}", [st], [t0]))
    o.append(valu("v_add_u32", va, t0, va))
    o.append(valu("v_lshl_add_u32", V(21), vg, 3, vt))
    o.append(valu("v_lshlrev_b32", V(21), 6, V(21)))
    o.append(valu("v_lshl_add_u32", V(21), vb, 4, V(21)))
    o.append(valu("v_add_u32", V(21), SB, V(21)))
    o.append(valu("v_lshrrev_b32", vt, 2, vLANE))
    o.append(valu("v_mul_u32_u24", vt, 384, vt))
    o.append(valu("v_and_b32", vb, 3, vLANE))
    o.append(valu("v_lshl_add_u32", vb, vb, 4, vt))
    o.append(salu(f"s_lshl_b32 {t0}, {sv}, 6", [sv], [t0, "scc"]))
    o.append(valu("v_add_u32", vb, t0, vb))
    o.append(salu(f"s_movk_i32 {t1}, {4*1152}", [], [t1]))
    for n in range(12):
        o.append(salu(f"s_mov_b32 {t0}, {n*16*384}", [], [t0]))
        o.append(salu(f"s_mov_b32 m0, {SB + scr_off(fb, n)}", [], ["m0"]))
        o.append(vm(dma(vb, SRD_WO, t0)))
    for ks in range(6):
        for b in range(2): o.append(vm(bload("buffer_load_dwordx4", pAf[b][ks], va, SRD_W, t1 if b else 0, 768 + 64*ks)))
    return o
def prod_compute(fb=0):
    o = []
    sv, st, t0, t1 = sPV, sPS, "s52", "s53"
    for ks in range(6):
        for a in range(2):
            for h in range(2):
                o.append(ds_read("ds_read_b64_tr_b16", pBf[a][ks].sub(2*h, 2), V(21), scr_off(fb, 2*ks) + h*256 + 8*a))
    for ks in range(6):
        for a in range(2):
            for b in range(2):
                o.append(mfma(pD[a][b], pAf[b][ks], pBf[a][ks], None if ks == 0 else pD[a][b]))
    o.append(salu(f"s_mul_i32 {t0}, {sv}, 12288", [sv], [t0]))
    o.append(salu(f"s_lshl_b32 {t1}, {st}, 10", [st], [t1, "scc"]))
    o.append(salu(f"s_add_u32 {t0}, {t0}, {t1}", [t0, t1], [t0, "scc"]))
    o.append(salu(f"s_add_u32 {t1}, {t0}, 6144", [t0], [t1, "scc"]))
    for a in range(2):
        for b in range(2):
            o.append(cvtpk(pO[a][2*b], pD[a][b][0], pD[a][b][1])); o.append(cvtpk(pO[a][2*b+1], pD[a][b][2], pD[a][b][3]))
        o.append(vm(bstore("buffer_store_dwordx4", pO[a], vL16, SRD_N, t1 if a else t0, 0, " sc1")))
    o.append(raw("s_nop 1"))
    return o
vPA, vPQ = V(22), V(23)
def slow_path():
    o = [label("L_slowN"), salu(f"s_movk_i32 {sCNT}, {opt['tmo']}", [], [sCNT]), label("L_pollN")]
    o.append(raw("s_sleep 4"))
    o.append(raw(f"buffer_load_dword {vPQ}, {vPA}, {SRD_D}, 0 offen sc1", regs_of(vPA, SRD_D), regs_of(vPQ), "vload_untracked"))
    o.append(raw("s_waitcnt vmcnt(0)"))
    o.append(valu("v_cmp_ne_u32", "vcc", 0x01010101, vPQ))
    o.append(salu("s_cmp_eq_u64 vcc, 0", ["vcc"], ["scc"]))
    o.append(raw("s_cbranch_scc1 L_okN", ["scc"]))
    o.append(salu(f"s_sub_u32 {sCNT}, {sCNT}, 1", [sCNT], [sCNT, "scc"]))
    o.append(raw("s_cbranch_scc0 L_pollN", ["scc"]))
    o.append(salu(f"s_mov_b32 {sJOB}, 0", [], [sJOB]))
    o.append(label("L_fb"))
    o += prod_issue(1) + [wait(vm=0)] + prod_compute(1)
    o.append(salu(f"s_add_u32 {sJOB}, {sJOB}, 1", [sJOB], [sJOB, "scc"]))
    o.append(salu(f"s_cmp_lt_u32 {sJOB}, 36", [sJOB], ["scc"]))
    o.append(raw("s_cbranch_scc1 L_fb", ["scc"]))
    o.append(wait(vm=0))
    o.append(raw("s_branch L_okN"))
    return finish(o)[0]

def stamp(k):
    return [P(raw(f"s_memtime s[{84+2*k}:{85+2*k}]", [], [], "smem"), pr=["#LDS"], pw=["#LDS"])] if opt["stamps"] else []

def main_kernel():
    pre = []
    if opt["stamps"]: pre.append(raw("s_memrealtime s[80:81]")); pre.append(raw("s_memtime s[84:85]")); pre.append(raw("s_memtime s[94:95]"))
    pre.append(raw("s_load_dwordx8 s[4:11], s[0:1], 0", ["s0","s1"], R("s",4,8), "smem"))
    pre.append(raw("s_load_dwordx4 s[12:15], s[0:1], 32", ["s0","s1"], R("s",12,4), "smem"))
    pre.append(salu("s_cmp_ge_u32 s2, 256", ["s2"], ["scc"]))
    pre.append(raw("s_cbranch_scc1 L_end", ["scc"]))
    t0, t1, t2, t3 = V(12), V(13), V(14), V(15)
    if opt["pf"]:
        pre.append(raw("s_getpc_b64 s[74:75]", [], ["s74", "s75"]))
        pre.append(salu("s_lshr_b32 s50, s2, 3", ["s2"], ["s50", "scc"]))
        pre.append(salu("s_lshl_b32 s50, s50, 8", ["s50"], ["s50", "scc"]))
        pre.append(valu("v_add_u32", t0, "s50", "v0"))
        pre.append(salu("s_and_b32 s74, s74, 0xffffff00", ["s74"], ["s74", "scc"]))
        pre.append(valu("v_and_b32", t0, 0x7ff, t0))
        pre.append(valu("v_lshlrev_b32", t0, 4, t0))
        pre.append(valu("v_min_u32", t0, f"L_cend-{KN}-16", t0))
        pre.append(raw(f"global_load_dwordx4 v[244:247], {t0}, s[74:75]", ["v12", "s74", "s75"], [], "vload_untracked"))
    pre.append(valu("v_and_b32", vLANE, 63, "v0"))
    pre.append(valu("v_lshrrev_b32", t0, 6, "v0"))
    pre.append(valu("v_readfirstlane_b32", sWAVE, t0, k="rfl"))
    pre.append(valu("v_lshlrev_b32", vL16, 4, vLANE))
    pre.append(salu("s_lshr_b32 s50, s2, 3", ["s2"], ["s50", "scc"]))
    pre.append(salu("s_and_b32 s51, s2, 7", ["s2"], ["s51", "scc"]))
    pre.append(salu("s_lshl_b32 s51, s51, 2", ["s51"], ["s51", "scc"]))
    pre.append(salu(f"s_add_u32 s51, s51, {sWAVE}", ["s51", sWAVE], ["s51", "scc"]))
    pre.append(salu(f"s_mul_i32 s50, s50, {7*224*384}", ["s50"], ["s50"]))
    pre.append(salu(f"s_mul_i32 s51, s51, {7*384}", ["s51"], ["s51"]))
    pre.append(salu("s_add_u32 s50, s50, s51", ["s50", "s51"], ["s50", "scc"]))
    pre.append(salu("s_mov_b32 s47, s50", ["s50"], ["s47"]))
    pre.append(valu("v_and_b32", t0, 15, vLANE))
    pre.append(valu("v_lshrrev_b32", t1, 4, vLANE))
    pre.append(valu("v_lshlrev_b32", t2, 4, t1))
    pre.append(valu("v_add_u32", t2, "s50", t2))
    for t in range(3):
        pre.append(valu("v_add_u32", t3, 16*t, t0))
        pre.append(valu("v_mul_u32_u24", vXO[t], 37, t3))
        pre.append(valu("v_lshrrev_b32", vXO[t], 8, vXO[t]))
        pre.append(valu("v_mul_u32_u24", vXO[t], 217, vXO[t]))
        pre.append(valu("v_add_u32", vXO[t], vXO[t], t3))
        pre.append(valu("v_mul_u32_u24", vXO[t], 384, vXO[t]))
        pre.append(valu("v_add_u32", vXO[t], vXO[t], t2))
    pre.append(valu("v_add_u32", vXO[3], (6*224+6)*384, t2))
    pre.append(salu(f"s_lshl_b32 {sJOB}, {sWAVE}, 8", [sWAVE], [sJOB, "scc"]))
    pre.append(salu(f"s_add_u32 {sJOB}, {sJOB}, s2", [sJOB, "s2"], [sJOB, "scc"]))
    vWA = V(24)
    pre.append(valu("v_lshrrev_b32", t2, 3, vLANE))
    pre.append(valu("v_mul_u32_u24", vWA, 1152, t2))
    pre.append(valu("v_and_b32", t2, 2, t2))
    pre.append(valu("v_and_b32", t3, 7, vLANE))
    pre.append(valu("v_xor_b32", t2, t2, t3))
    pre.append(valu("v_lshl_add_u32", vWA, t2, 4, vWA))
    pre.append(salu(f"s_and_b32 s51, {sWAVE}, 2", [sWAVE], ["s51", "scc"]))
    pre.append(salu("s_lshl_b32 s50, s51, 5", ["s51"], ["s50", "scc"]))
    pre.append(valu("v_xor_b32", vWA, "s50", vWA))
    pre.append(salu(f"s_mul_i32 s50, {sWAVE}, 9216", [sWAVE], ["s50"]))
    pre.append(valu("v_add_u32", vWA, "s50", vWA))
    pre.append(salu(f"s_and_b32 s51, {sWAVE}, 1", [sWAVE], ["s51", "scc"]))
    pre.append(salu(f"s_mul_i32 {sW6}, {sWAVE}, 6144", [sWAVE], [sW6]))
    sJ = [f"s{56+j}" for j in range(6)]; sL = [f"s{62+j}" for j in range(6)]
    pre.append(salu("s_lshr_b32 s50, s2, 3", ["s2"], ["s50", "scc"]))
    pre.append(salu("s_mul_i32 s52, s50, 43", ["s50"], ["s52"]))
    pre.append(salu("s_lshr_b32 s52, s52, 8", ["s52"], ["s52", "scc"]))
    pre.append(salu("s_mul_i32 s52, s52, 6", ["s52"], ["s52"]))
    pre.append(salu("s_sub_u32 s50, s50, s52", ["s50", "s52"], ["s50", "scc"]))
    if not opt["rot"]: pre.append(salu("s_mov_b32 s50, 0", [], ["s50"]))
    pre.append(salu(f"s_lshl_b32 s53, {sWAVE}, 10", [sWAVE], ["s53", "scc"]))
    for j in range(6):
        pre.append(salu(f"s_mul_i32 {sJ[j]}, s50, 36864", ["s50"], [sJ[j]]))
        pre.append(salu(f"s_lshl_b32 {sL[j]}, s50, 12", ["s50"], [sL[j], "scc"]))
        pre.append(salu(f"s_add_u32 {sL[j]}, {sL[j]}, s53", [sL[j], "s53"], [sL[j], "scc"]))
        if j < 5:
            pre.append(salu("s_add_u32 s50, s50, 1", ["s50"], ["s50", "scc"]))
            pre.append(salu("s_cmp_eq_u32 s50, 6", ["s50"], ["scc"]))
            pre.append(salu("s_cselect_b32 s50, 0, s50", ["s50", "scc"], ["s50"]))
    pre.append(wait(lgkm=0))
    pre += srd(SRD_W, 6, 192*576*2) + srd(SRD_X, 4, XBYTES) + srd(SRD_N, 14, 0x200000 if opt["stamps"] else NOFF) + srd(SRD_WO, 8, 192*192*2) + srd(SRD_D, 12, 256)
    pre.append(salu(f"s_cmp_ge_u32 {sJOB}, 36", [sJOB], ["scc"]))
    pre.append(raw("s_cbranch_scc1 L_np1", ["scc"]))
    pre += prod_issue()
    pre.append(label("L_np1"))
    pre = finish(pre)[0]
    q = []
    def wpiece(kk, m, j):
        imm = m*384 + kk*128
        return [salu(f"s_add_u32 m0, {sL[j]}, {kk*49152 + m*24576 - imm}", [sL[j]], ["m0", "scc"]),
                vm(dma(vWA, SRD_W, sJ[j], f" offset:{imm}"), tag=f"W{kk}")]
    xl = []
    vXR = [[V(248+2*t+h) for h in range(2)] for t in range(4)]
    sXA, sXBb = "s68", "s69"
    xcnt = [0]
    RAW = lambda r, j: A_(48 + ((r-4)*3 + j)*4, 4)
    def xsetup(B):
        vXC = [V(B+j) for j in range(3)]; vXB = V(B+3); vL7 = V(B+4); u0, u1 = V(B+5), V(B+6)
        o = [valu("v_lshrrev_b32", u0, 3, vLANE), valu("v_lshlrev_b32", vXB, 7, u0), valu("v_add_u32", vXB, "s47", vXB), valu("v_and_b32", vL7, 7, vLANE)]
        for j in range(3):
            o += [valu("v_add_u32", u1, 8*j, u0), valu("v_mul_u32_u24", u1, 43, u1), valu("v_lshrrev_b32", vXC[j], 7, u1)]
        return o
    def xmask(d):
        d.t = "s_mov_b64 exec, s[70:71]\n    " + d.t + "\n    s_mov_b64 exec, -1"; d.rd |= {"s70", "s71"}; return d
    def xdma(r, B=200, reg=0):
        vXC = [V(B+j) for j in range(3)]; vXB = V(B+3); vL7 = V(B+4); vXT = [V(B+5), V(B+6), V(B+7)]
        o = []
        o.append(salu(f"s_mov_b32 s50, {r*86016}", [], ["s50"]))
        if not reg: o.append(salu(f"s_add_u32 m0, {sXA if r < 4 else sXBb}, {(r if r < 4 else r-4)*2688}", [sXA, sXBb], ["m0", "scc"]))
        for j in range(3):
            t = vXT[xcnt[0] % 3]; xcnt[0] += 1
            o.append(valu("v_add_u32", t, 7*r, vXC[j]))
            o.append(valu("v_bfe_u32", t, t, 1, 3))
            o.append(valu("v_xor_b32", t, t, vL7))
            o.append(valu("v_lshl_add_u32", t, t, 4, vXB))
            if reg: d = vm(bload("buffer_load_dwordx4", RAW(r, j), t, SRD_X, "s50", j*1024, FLG[opt["xfl"]]))
            else: d = vm(dma(t, SRD_X, "s50", f" offset:{j*1024}" + FLG[opt["xfl"]]), tag=f"XR{r}")
            o.append(xmask(d) if j == 2 else d)
        return o
    def wmix(kk, nx):
        o = []; ws = [wpiece(kk, m, j) for m in range(2) for j in range(6)]
        done = 0
        for n, w in enumerate(ws):
            o += w
            want = (nx * (n+1) // 12) // 2 * 2
            while done < want: o.append(xl.pop(0)); done += 1
        return o
    XS = (0, 0, 0)
    q.append(salu("s_mov_b32 s70, -1", [], ["s70"])); q.append(salu("s_movk_i32 s71, 0xff", [], ["s71"]))
    w0, w1 = wmix(0, 0), wmix(1, 0)
    if not opt["xe"]: q += w0 + w1
    else:
        xr = [i for r in range(4, 4+opt["ne"]) for i in xdma(r, 32, 1)]
        xo = opt["xo"]; h = len(xr) // opt["ne"] if opt["ne"] else 0
        if xo == 0: q += w0 + xsetup(32) + xr + w1
        if xo == 1: q += xsetup(32) + xr + w0 + w1
        if xo == 2: q += w0 + w1[:12] + xsetup(32) + xr + w1[12:]
        if xo == 3: q += w0 + w1 + xsetup(32) + xr
        if xo == 4: q += w0[:12] + xsetup(32) + xr[:h] + w0[12:] + xr[h:] + w1
    nq = len([i for i in q if i.k in ("dma", "vload")])
    assert nq + 24 <= 63
    q += srd(SRD_O, 10, XBYTES)
    q.append(salu(f"s_lshl_b32 s52, {sWAVE}, 2", [sWAVE], ["s52", "scc"]))
    q.append(valu("v_cmp_eq_u32", "vcc", "s52", t0))
    q.append(valu("v_mov_b32", vSO3, 0x7f000000))
    q.append(valu("v_cndmask_b32", vSO3, vSO3, vXO[3], "vcc"))
    q.append(valu("v_mov_b32", vNR[0], vL16))
    q.append(valu("v_add_u32", vNR[1], 49152, vL16))
    q.append(valu("v_add_u32", vNR[2], 98304, vL16))
    q.append(valu("v_add_u32", vND, sW6, vL16))
    q.append(valu("v_min_u32", vPA, 8, vLANE)); q.append(valu("v_lshlrev_b32", vPA, 2, vPA))
    vRA = [V(26), V(27)]; vRB = [V(28), V(29)]; vMW = V(30)
    q.append(valu("v_lshrrev_b32", t2, 2, t0))
    q.append(valu("v_and_b32", t3, 3, t0))
    q.append(valu("v_lshl_add_u32", t2, t2, 3, t3))
    q.append(valu("v_lshlrev_b32", vRA[0], 7, t2))
    q.append(valu("v_and_b32", t2, 2, t0))
    q.append(valu("v_xor_b32", t2, t2, t1))
    q.append(valu("v_lshrrev_b32", t3, 1, t0))
    q.append(valu("v_and_b32", t3, 4, t3))
    q.append(valu("v_xor_b32", t2, t2, t3))
    q.append(valu("v_lshl_add_u32", vRA[0], t2, 4, vRA[0]))
    q.append(valu("v_xor_b32", vRA[1], 64, vRA[0]))
    q.append(salu(f"s_lshr_b32 s50, {sWAVE}, 1", [sWAVE], ["s50", "scc"]))
    q.append(salu(f"s_mul_i32 s52, s50, {96*128}", ["s50"], ["s52"]))
    q.append(salu("s_add_u32 s52, s52, 24576", ["s52"], ["s52", "scc"]))
    q.append(salu(f"s_mul_i32 s53, s51, {96*128}", ["s51"], ["s53"]))
    q.append(valu("v_add_u32", vRB[0], "s52", vRA[0])); q.append(valu("v_add_u32", vRB[1], "s52", vRA[1]))
    q.append(valu("v_add_u32", vRA[0], "s53", vRA[0])); q.append(valu("v_add_u32", vRA[1], "s53", vRA[1]))
    q.append(salu("s_mul_i32 s52, s50, 36864", ["s50"], ["s52"]))
    q.append(salu("s_mul_i32 s53, s51, 3072", ["s51"], ["s53"]))
    q.append(salu("s_add_u32 s52, s52, s53", ["s52", "s53"], ["s52", "scc"]))
    q.append(salu(f"s_add_u32 s52, s52, {MOFF}", ["s52"], ["s52", "scc"]))
    q.append(valu("v_add_u32", vMW, "s52", vL16))
    q.append(valu("v_mov_b32", vNINF, 0xff800000))

    c = 192 ** -0.5 * math.log2(math.e)
    q.append(salu(f"s_mov_b32 {sC}, 0x{struct.unpack('<I', struct.pack('<f', c))[0]:08x}", [], [sC]))
    q.append(salu(f"s_mov_b32 s43, {sC}", [sC], ["s43"]))
    q.append(salu(f"s_mov_b64 {sMASK}, 0xffff", [], sMASK.regs()))
    q.append(salu(f"s_lshl_b32 s52, {sWAVE}, 4", [sWAVE], ["s52", "scc"]))
    q.append(salu(f"s_lshl_b64 {sMASK}, {sMASK}, s52", sMASK.regs() + ["s52"], sMASK.regs() + ["scc"]))
    q.append(salu(f"s_cmp_ge_u32 {sJOB}, 36", [sJOB], ["scc"]))
    q.append(raw("s_cbranch_scc1 L_np2", ["scc"]))
    q.append(raw(f"s_waitcnt vmcnt({nq})"))
    pc = finish(prod_compute())[0]
    q.append(raw(text(pc).strip() + "\nL_np2:", [], []))
    q += stamp(1)
    u0, u1 = V(205), V(206)
    q += xsetup(200)
    q.append(salu(f"s_mul_i32 {sXA}, {sWAVE}, 10752", [sWAVE], [sXA]))
    q.append(salu(f"s_lshl_b32 {sXBb}, {sWAVE}, 13", [sWAVE], [sXBb, "scc"]))
    q.append(salu(f"s_add_u32 {sXBb}, {sXBb}, 49152", [sXBb], [sXBb, "scc"]))
    q.append(valu("v_add_u32", V(31), sXBb, vL16))
    q.append(salu(f"s_sub_u32 s52, {sXBb}, 10752", [sXBb], ["s52", "scc"]))
    q.append(valu("v_lshrrev_b32", u0, 1, t0))
    q.append(valu("v_xor_b32", u0, u0, t1))
    q.append(valu("v_lshlrev_b32", u0, 4, u0))
    q.append(valu("v_mul_u32_u24", u1, 384, t0))
    q.append(valu("v_add_u32", u0, u0, u1))
    q.append(valu("v_add_u32", vXR[0][0], sXA, u0))
    q.append(valu("v_add_u32", vXR[2][0], "s52", u0))
    q.append(valu("v_cmp_gt_u32", "vcc", 12, t0))
    q.append(valu("v_cndmask_b32", vXR[1][0], vXR[2][0], vXR[0][0], "vcc"))
    q.append(valu("v_add_u32", vXR[1][0], 16*384, vXR[1][0]))
    q.append(valu("v_add_u32", vXR[2][0], 32*384, vXR[2][0]))
    q.append(valu("v_lshlrev_b32", u1, 4, t1))
    q.append(valu("v_lshrrev_b32", u0, 2, t0))
    q.append(valu("v_lshl_add_u32", u1, u0, 13, u1))
    q.append(valu("v_add_u32", vXR[3][0], 49152 + 20*384, u1))
    q.append(valu("v_add_u32", vM3, MOFF, vND))
    for t in range(4): q.append(valu("v_xor_b32", vXR[t][1], 64, vXR[t][0]))

    p = []
    def sync(tag, rdregs, after=(), lg=None):
        w = I("WAIT", rdregs, [], "wait", {"tag": tag, "lgkm": lg, "vm": None})
        p.append(P(w, pr=["#LDS", "#VM"] + list(after), pw=["#LDS", "#VM"], fence=1))
        p.append(P(barrier(), pr=["#LDS"], pw=["#LDS"], fence=1))
    def wdma(base, part, tag, out):
        for half in range(2):
            off = part*24576 + half*4096
            out.append(salu(f"s_mov_b32 s50, {off}", [], ["s50"]))
            out.append(salu(f"s_add_u32 m0, {sW6}, {off + base}", [sW6], ["m0", "scc"]))
            for jj in range(4 if half == 0 else 2):
                out.append(vm(dma(vND, SRD_N, "s50", f" offset:{jj*1024}" + FLG[opt["mfl"]]), tag=tag))
    def reads(n):
        for s in range(6):
            off = MOFF + (n*6 + s)*1024 if n < 12 else ((n-12)*6 + s)*1024
            bi = min(off // 49152, 2)
            p.append(P(ds_read("ds_read_b128", WB(n & 1, s), vNR[bi], off - bi*49152), pr=["#LDS"]))
    AC3 = lambda k: ACC(k & 1, 3)
    T3T = {opt["t3a"] + opt["t3s"]*k: k for k in range(3)}
    NB = opt["nb"]
    U3T = {NB + 1 + k: k for k in range(3)}
    assert NB + 3 <= 10 and max(T3T) < NB
    def reads3(k, isN):
        for s in range(6):
            p.append(P(ds_read("ds_read_b128", WB3(s), vND if isN else vM3, k*24576 + s*1024), pr=["#LDS"]))
    def out3(k):
        c = AC3(k)
        p.append(cvtpk(c[0], c[0], c[1])); p.append(cvtpk(c[1], c[2], c[3]))
        p.append(P(ds_write("ds_write_b64", vE, c.sub(0, 2), k*2048), pr=["#LDS"], pw=["#E"]))
    def tgroup(tau):
        b = tau & 1
        for s in range(6):
            for t in range(3):
                i = mfma(ACC(b, t), WB(b, s), X(t, s), None if s == 0 else ACC(b, t))
                if s == 3 and t == 0: P(i, pw=[f"#g{tau}"])
                p.append(i)
            if tau in T3T: p.append(mfma(AC3(T3T[tau]), WB3(s), X(3, s), None if s == 0 else AC3(T3T[tau])))
            if tau in U3T: p.append(mfma(AC3(U3T[tau]), X(3, s), WB3(s), None if s == 0 else AC3(U3T[tau])))
    def tcvts(tau):
        a = tau & 1
        for t in range(3):
            d = TF(tau >> 1, t)
            p.append(cvtpk(d[2*a], ACC(a, t)[0], ACC(a, t)[1])); p.append(cvtpk(d[2*a+1], ACC(a, t)[2], ACC(a, t)[3]))
        if tau in T3T: out3(T3T[tau])
        if tau in U3T and tau != 10: out3(U3T[tau])
    def sblock(v):
        for tq in range(3):
            for tk in range(4):
                p.append(mfma(SA(tk, tq), X(tk, v), TF(v, tq), None if v == 0 else SA(tk, tq)))
    def sblock3():
        for v in range(6):
            for tk in range(4):
                p.append(mfma(SA(tk, 3), X(tk, v), TF3(v), None if v == 0 else SA(tk, 3)))
    def ugroup(tau):
        b = tau & 1
        for s in range(6):
            for t in range(3):
                p.append(mfma(ACC(b, t), X(t, s), WB(b, s), None if s == 0 else ACC(b, t)))
    def ucvts(tau):
        b = tau & 1
        for t in range(3):
            d = UF(tau, t >> 1)
            p.append(cvtpk(d[2*(t&1)], ACC(b, t)[0], ACC(b, t)[1])); p.append(cvtpk(d[2*(t&1)+1], ACC(b, t)[2], ACC(b, t)[3]))
    def xlane(op, m, m2):
        for sw in ("v_permlane32_swap_b32", "v_permlane16_swap_b32"):
            p.append(valu("v_mov_b32", m2, m))
            p.append(I(f"{sw} {m}, {m2}", regs_of(m, m2), regs_of(m, m2), "perm"))
            p.append(valu(op, m, m, m2))
    def softmax(tq):
        n0_ = len(p)
        m, m2, s1, s2 = (TMP(tq, k) for k in range(4))
        vals = [SA(tk, tq)[r] for tk in range(3) for r in range(4)] + [SA(3, tq)[0]]
        L = vals[12]
        p.append(valu("v_cndmask_b32", L, vNINF, L, sMASK))
        p.append(valu("v_max3_f32", m, vals[0], vals[1], vals[2]))
        p.append(valu("v_max3_f32", m2, vals[3], vals[4], vals[5]))
        p.append(valu("v_max3_f32", m, m, vals[6], vals[7]))
        p.append(valu("v_max3_f32", m2, m2, vals[8], vals[9]))
        p.append(valu("v_max3_f32", m, m, vals[10], vals[11]))
        p.append(valu("v_max3_f32", m, m, m2, L))
        xlane("v_max_f32", m, m2)
        p.append(valu("v_mul_f32", m, sC, m))
        for k, v in enumerate(vals):
            p.append(valu("v_fma_f32", v, v, sC, "-" + str(m)))
            p.append(valu("v_exp_f32", v, v, k="trans"))
            if k == 3: p.append(valu("v_add_f32", s1, vals[0], vals[1]))
            if k == 4: p.append(valu("v_add_f32", s2, vals[2], vals[3]))
            if k >= 5: p.append(valu("v_add_f32", (s1, s2)[k & 1], (s1, s2)[k & 1], vals[k-1]))
        p.append(valu("v_add_f32", s2, s2, L))
        p.append(valu("v_add_f32", s1, s1, s2))
        xlane("v_add_f32", s1, s2)
        p.append(valu("v_rcp_f32", s1, s1, k="trans"))
        for k in range(6):
            for h in range(2): p.append(valu("v_mul_f32", vals[2*k+h], vals[2*k+h], s1))
            p.append(cvtpk(PF(tq, k >> 2)[k & 3], vals[2*k], vals[2*k+1]))
        p.append(valu("v_mul_f32", L, L, s1))
        p.append(cvtpk(PF(tq, 1)[2], L, 0))
        p.append(valu("v_mov_b32", PF(tq, 1)[3], 0))
        for i in p[n0_:]: i.x["bg"] = 1
    OA = lambda b, a, tq: V(32 + b*32 + (a*4+tq)*4, 4)
    OUT = lambda k: V(16 + (k % 4)*4, 4)
    cnt = [0]
    def omf(v, tq, a):
        for ks in range(2):
            p.append(mfma(OA(v & 1, a, tq), UF(2*v+a, ks), PF(tq, ks), None if ks == 0 else OA(v & 1, a, tq)))
    def ost(v, tq):
        b = v & 1; o = OA(b, 0, tq)
        for a in range(2):
            p.append(cvtpk(o[2*a], OA(b, a, tq)[0], OA(b, a, tq)[1])); p.append(cvtpk(o[2*a+1], OA(b, a, tq)[2], OA(b, a, tq)[3]))
        p.append(vm(bstore("buffer_store_dwordx4", o, vXO[tq] if tq < 3 else vSO3, SRD_O, 0, 64*v, FLG[opt["sfl"]])))
    def ounit(v, tq): omf(v, tq, 0); omf(v, tq, 1); ost(v, tq)
    PRODREGS = R("v", 176, 72) + R("v", 16, 6) + ["v23"] + R("s", 52, 4) + ["vcc", "m0"]
    FA = lambda buf, sp, b: A_(96 + buf*48 + (sp*2+b)*4, 4)
    FB = lambda buf, vp, a: A_(96 + buf*48 + 24 + (vp*2+a)*4, 4)
    MD = lambda vp, a, sp, b: V(32 + (((vp*2+a)*3+sp)*2+b)*4, 4)
    def mreads(ks):
        kk, kh = ks >> 1, ks & 1
        base = 49152 if kk == 1 else 0
        for x in range(3):
            for y in range(2):
                p.append(P(ds_read("ds_read_b128", FA(ks & 1, x, y), vRA[kh], base + x*4096 + y*512), pr=["#LDS"]))
                p.append(P(ds_read("ds_read_b128", FB(ks & 1, x, y), vRB[kh], base + x*4096 + y*512), pr=["#LDS"]))
    def mgroup(ks):
        for vp in range(3):
            for a in range(2):
                for sp in range(3):
                    for b in range(2):
                        p.append(mfma(MD(vp, a, sp, b), FA(ks & 1, sp, b), FB(ks & 1, vp, a), None if ks == 0 else MD(vp, a, sp, b)))
    allF = [r for buf in range(2) for r in A_(96 + buf*48, 48).regs()]
    fl = "" if opt["nofl"] else f"buffer_store_byte v16, v17, {SRD_D}, {sJOB} offen sc1\n    "
    st = "s_memtime s[94:95]\n    " if opt["stamps"] else ""
    flag = P(raw(f"s_cmp_ge_u32 {sJOB}, 36\n    s_cbranch_scc1 L_np3\n    v_mov_b32 v16, 1\n    v_mov_b32 v17, 0\n    s_mov_b64 exec, 1\n    {fl}{st}s_mov_b64 exec, -1\nL_np3:", [sJOB], ["scc", "v16", "v17"]), pr=["#LDS", "#VM"], pw=["#LDS", "#VM"], fence=1)
    def mark(c):
        for k in (6, 7, 8):
            if opt[f"st{k}"] == c: p.extend(stamp(k))
    def xwait(tag): p.append(P(I("WAIT", [], [], "wait", {"tag": tag, "lgkm": None, "vm": None}), pr=["#LDS", "#VM"], pw=["#LDS", "#VM"], fence=1))
    def xreads(ts):
        for s in range(6):
            for t in ts: p.append(P(ds_read("ds_read_b128", X(t, s), vXR[t][s & 1], (s >> 1)*128), pr=["#LDS", "#XW"]))
    def stage(k0, lead, loads):
        n = len(p); mgroup(k0); mgroup(k0+1); g = p[n:]; del p[n:]
        P(g[max(lead, 1)-1], pw=[f"#ld{k0}"])
        p.extend(g)
        for i in loads:
            if i.k in ("dma", "vload"): P(i, pr=[f"#ld{k0}"])
            p.append(i)
    NE = opt["ne"] if opt["xe"] else 3
    sync("W0", []); mark(-1); mreads(0); mreads(1)
    stage(0, opt["ld1"], [i for r in range(4+NE, 7) for i in xdma(r, 200, 1)] + wmix(2, 0))
    sync("W1", allF, lg=0)
    mark(-2)
    p.append(flag)
    mreads(2); mreads(3)
    stage(2, opt["ld2"], [i for r in ((2, 3, 0, 1) if opt["xe"] else (0, 1, 2, 3)) for i in xdma(r)])
    sync("W2", allF, lg=0); mark(-3)
    for r in vRA + vRB: p.append(valu("v_add_u32", r, 98304, r))
    mreads(4); mreads(5)
    if opt["xe"]:
        for r in range(4, 7):
            for j in range(3):
                d = P(ds_write("ds_write_b128", V(31), RAW(r, j), (r-4)*2688 + j*1024), pr=["#LDS"], pw=["#XW"])
                p.append(xmask(d) if j == 2 else d)
    k = 0; nm = 0
    for vp in range(3):
        for a in range(2):
            for sp in range(3):
                for ks in (4, 5):
                    for b in range(2):
                        p.append(mfma(MD(vp, a, sp, b), FA(ks & 1, sp, b), FB(ks & 1, vp, a), MD(vp, a, sp, b)))
                        nm += 1
                        if nm == opt["xw"]:
                            P(p[-1], pw=["#m4a"])
                            p.append(P(I("WAIT", allF, [], "wait", {"tag": "none", "lgkm": 0, "vm": None}), pr=["#LDS", "#m4a"], pw=["#LDS", "#RD"], fence=1))
                            p.append(P(barrier(), pr=["#LDS"], pw=["#LDS", "#RD"], fence=1))
                            mark(-5)
                            if opt["xe"]: xreads([2, 3])
    for vp in range(3):
        for a in range(2):
            for sp in range(3):
                o = V(176 + (k % 6)*4, 4); k += 1
                for b in range(2):
                    p.append(cvtpk(o[2*b], MD(vp,a,sp,b)[0], MD(vp,a,sp,b)[1])); p.append(cvtpk(o[2*b+1], MD(vp,a,sp,b)[2], MD(vp,a,sp,b)[3]))
                p.append(P(ds_write("ds_write_b128", vMW, o, vp*12288 + a*6144 + sp*1024), pr=["#LDS"], pw=["#MW"]))
    n0 = len([i for i in p if i.k == "mfma"])

    mark(-6)
    p.append(P(wait(lgkm=0), pr=["#LDS", "#MW"], pw=["#LDS"], fence=1))
    p.append(P(barrier(), pr=["#LDS"], pw=["#LDS"], fence=1))
    mark(-4)
    reads(0)
    if not opt["xe"]:
        for r in range(4, 7): p.extend([P(i, pr=["#LDS"]) if i.k == "dma" else i for i in xdma(r)])
    p.append(P(vm(bload("buffer_load_dword", vPQ, vPA, SRD_D, 0, 0, " sc1")), pr=["#LDS"]))
    if opt["xe"]:
        xwait("XR3"); xreads([1]); xwait("XR1")
        p += stamp(2)
        xreads([0])
    else:
        xwait("XR3"); xreads([0]); xwait("XR4"); xreads([1]); xwait("XR6")
        p += stamp(2)
        xreads([2, 3])
    PT = opt["ptau"]
    assert opt["xe"] and opt["t3a"] > PT
    p.append(valu("v_lshlrev_b32", vR8, 3, vLANE))
    p.append(valu("v_add_u32", vR8, T3B, vR8))
    p.append(salu(f"s_lshl_b32 s50, {sWAVE}, 9", [sWAVE], ["s50", "scc"]))
    p.append(valu("v_add_u32", vE, "s50", vR8))
    for tau in range(12):
        last = tau == 11
        reads(tau+1)
        if tau in T3T: reads3(T3T[tau], 0)
        if tau in U3T: reads3(U3T[tau], 1)
        if tau == 11 and 10 in U3T: out3(U3T[10])
        gm = len(p); tgroup(tau); g = p[gm:]; del p[gm:]
        if tau == PT - 1 and not opt["early"]:
            p.append(P(vm(bload("buffer_load_dword", vPQ, vPA, SRD_D, 0, 0, " sc1")), pr=[f"#g{tau-1}"]))
        if tau == PT or last or tau == NB:
            p.extend(g[:10])
            if tau == PT:
                p.append(P(valu("v_cmp_ne_u32", "vcc", 0x01010101, vPQ), pr=[f"#g{tau}"], fence=1))
                p.append(P(salu("s_cmp_eq_u64 vcc, 0", ["vcc"], ["scc"]), fence=1))
                p.append(P(salu(f"s_cselect_b32 s52, 1, {sWAVE}", ["scc", sWAVE], ["s52"]), fence=1))
                p.append(P(salu("s_cmp_eq_u32 s52, 0", ["s52"], ["scc"]), fence=1))
                p.append(P(raw("s_cbranch_scc1 L_slowN\nL_okN:", ["scc"], PRODREGS), pr=["#LDS", "#VM"], pw=["#LDS", "#VM"], fence=1))
                p.append(P(barrier(), pr=["#LDS"], pw=["#LDS", "#VM"], fence=1))
                nb = len(p)
                for part in range(3): wdma(0, part, "N", p)
                for i in p[nb:]: i.x["bg"] = 1
            elif tau == NB:
                sync("N", [], after=[f"#g{tau}", "#E"], lg=0)
                for v in range(6):
                    p.append(P(I(f"ds_read2st64_b64 {TF3(v)}, {vR8} offset0:{2*v} offset1:{2*v+1}", regs_of(vR8), regs_of(TF3(v)), "ds_read"), pr=["#LDS"]))
                p.append(valu("v_add_u32", vE, U3D, vE)); p.append(valu("v_add_u32", vR8, U3D, vR8))
            else:
                sync("none", [], after=[f"#g{tau}", "#E"], lg=0)
                p += stamp(3)
                for t2_ in range(8): p.append(P(ds_read("ds_read_b64", UF(t2_, 1).sub(2, 2), vR8, t2_*512), pr=["#LDS"], bg=1))
            p.extend(g[10:])
        else: p.extend(g)
        if tau > 0: tcvts(tau-1)
        if tau >= 2 and tau % 2 == 0: sblock(tau//2 - 1)
        if tau == NB: sblock3(); softmax(3)
    n1 = len([i for i in p if i.k == "mfma"])
    reads(13); ugroup(0); tcvts(11); sblock(5)
    ucvts(0)
    for t2_ in range(8, 12): p.append(P(ds_read("ds_read_b64", UF(t2_, 1).sub(2, 2), vR8, t2_*512), pr=["#LDS"]))
    SEQ = {
     1: {3: "00", 4: "10", 6: "20 01 11", 7: "21", 8: "30 31", 9: "02 12 22", 10: "32 40 41 42", 11: "03 13 23 33 43"},
     2: {3: "00", 4: "10", 5: "01", 6: "11 20 21", 8: "30 31 02 12", 9: "22 32", 10: "40 41 42 03 13", 11: "23 33 43"},
     3: {4: "00 10", 6: "20 01 11", 7: "21", 8: "30 31", 9: "02 12 22 32", 10: "40 41 42", 11: "03 13 23 33 43"},
     4: {4: "00 10", 6: "20", 7: "01 11 21", 8: "30 31", 10: "02 12 22 32 40 41 42", 11: "03 13 23 33 43"},
     5: {3: "00", 4: "10", 6: "20", 7: "01 11 21", 8: "30 31", 10: "40 41 02 12", 11: "22 32 42 50 51 52 03 13 23 33 43 53"},
     6: {4: "00 10", 6: "20", 7: "01 11 21", 8: "30 31", 10: "40 41 02 12 22", 11: "32 42 50 51 52 03 13 23 33 43 53"},
     7: {3: "00", 4: "10", 6: "20 01", 7: "11 21", 8: "30 31", 9: "02", 10: "40 41 12 22", 11: "32 42 50 51 52 03 13 23 33 43 53"},
     8: {3: "00", 4: "10", 6: "20", 7: "01 11", 8: "21 30", 9: "31", 10: "40 41", 11: "02 12 22 32 42 50 51 52 03 13 23 33 43 53"},
     9: {2: "03", 3: "00", 4: "10 13", 6: "20 23 01", 7: "11 21", 8: "30 31 33", 9: "02", 10: "12 22 32 40 41 42 43", 11: "50 51 52 53"},
     10: {2: "03", 4: "00 10 13", 6: "20 23", 7: "01 11 21", 8: "30 31 33", 10: "40 41 43 02 12 22", 11: "32 42 50 51 52 53"},
     11: {2: "03", 3: "00", 4: "10 13", 6: "20 23 01 11", 7: "21", 8: "30 31 33 02", 9: "12 22 32", 10: "40 41 42 43", 11: "50 51 52 53"},
     12: {2: "03", 4: "13 00 10", 6: "23 20", 7: "01 11 21", 8: "33 30 31", 9: "02 12", 10: "43 40 41 22 32 42", 11: "53 50 51 52"},
     13: {2: "03", 4: "13", 5: "00 10", 6: "20 23", 8: "30 33 01 11", 9: "21 31", 10: "40 43 41", 11: "50 53 51 02 12 22 32 42 52"},
     14: {2: "03", 4: "13 00", 5: "10", 6: "20 23", 7: "01", 8: "30 33 11 21", 9: "31", 10: "40 43 41 02", 11: "12 22 50 53 51 32 42 52"},
     15: {2: "03", 4: "13 00 10", 6: "20 23", 7: "01 11", 8: "21 30 33 31", 10: "40 43 41 02 12", 11: "22 32 50 53 51 42 52"},
     16: {2: "03", 4: "13 00 10", 6: "20 23", 7: "01 11 21", 8: "30 33 31", 10: "40 43 41 02 12 22 32", 11: "42 50 53 51 52"},
    }[opt["seq"]]
    for tq in range(3): softmax(tq)
    for tau in range(1, 12):
        if tau + 1 < 12: reads(12+tau+1)
        for k in (6, 7, 8):
            if tau == opt[f"st{k}"]: p.extend(stamp(k))
        if tau == opt["wb"]:
            p.append(P(raw(f"s_cmp_ge_u32 {sJOB}, {opt['wbn']}\n    s_cbranch_scc1 L_nwb\n    buffer_wbl2 sc1\nL_nwb:", [sJOB], ["scc"]), pr=["#VM"], pw=["#VM"]))
        ugroup(tau)
        ucvts(tau)
        for e in SEQ.get(tau, "").split(): ounit(int(e[0]), int(e[1]))
    if opt["seq"] < 5:
        for tq in range(4): omf(5, tq, 0)
        for tq in range(4): omf(5, tq, 1); ost(5, tq)
    n2 = n1 + 24 + 16 + 24*8 + 40
    mf = [i for i in p if i.k == "mfma"]
    mi = {id(i): n for n, i in enumerate(mf)}
    def perfn(j):
        n = mi[id(p[j])]
        return opt["per1"] if n < n1 + 40 else (opt["persm"] if n < n2 else opt["per2"])
    body, t = schedule(p, look=32, perfn=perfn)
    post = []
    if opt["stamps"]:
        post.append(raw("s_memtime s[92:93]")); post.append(raw("s_memrealtime s[82:83]"))
        post.append(wait(lgkm=0))
        post.append(salu("s_lshl_b32 s50, s2, 2")); post.append(salu(f"s_add_u32 s50, s50, {sWAVE}")); post.append(salu("s_lshl_b32 s50, s50, 6")); post.append(salu("s_add_u32 s50, s50, 0x100000"))
        for k, (a, b) in enumerate([("s80", None), ("s81", None), ("s82", None), ("s94", "s84"), ("s86", "s84"), ("s88", "s84"), ("s90", "s84"), ("s92", "s84"), ("s96", "s84"), ("s98", "s84"), ("s100", "s84"), ("s100", None)]):
            if b: post.append(salu(f"s_sub_u32 {a}, {a}, {b}"))
            post.append(valu("v_mov_b32", V(96+k), a))
        post.append(valu("v_mov_b32", V(108), 0))
        post.append(salu("s_mov_b64 exec, 1"))
        for k in range(3): post.append(bstore("buffer_store_dwordx4", V(96+4*k,4), V(108), SRD_N, "s50", 16*k))
    post.append(label("L_end")); post.append(raw("s_endpgm"))
    full, nn = finish(q + body + post)
    tail = slow_path()
    sys.stderr.write(f"main: {len(full)} instrs, mfma {len(mf)}, est cycles {t}, nop states {nn}\n")
    return pre + full + tail

print(f"""; swin window attention: M = Wq*Wk^T computed per workgroup while x streams in; N = Wv*Wo computed once by 36 producer
; @launch grid=(256,1,1) block=(256,1,1) lds=163840
.amdgcn_target "amdgcn-amd-amdhsa--gfx950"
.text
.globl {KN}
.p2align 8
.type {KN},@function
{KN}:
{text(main_kernel())}
.p2align 6
L_cend:
.section .rodata,"a"
.p2align 6
.amdhsa_kernel {KN}
  .amdhsa_next_free_vgpr 448
  .amdhsa_next_free_sgpr 102
  .amdhsa_accum_offset 256
  .amdhsa_group_segment_fixed_size 0
  .amdhsa_kernarg_size 48
  .amdhsa_user_sgpr_count 2
  .amdhsa_user_sgpr_kernarg_segment_ptr 1
  .amdhsa_system_sgpr_workgroup_id_x 1
.end_amdhsa_kernel""")
```

```python
import sys, math, struct
from asmgen import *
KN = "standalone__swin_window_attn__vision_kernel"
XBYTES = 224*224*192*2
opt = dict(mml=2, psl=8, npo=1, pw=0, bo=2, hs=0, nsp=1, ms=0, xord=0, pearly=3, noflm=0, per1=2, per2=2, persm=2, stamps=0, xfl=1, sfl=0, mfl=2, tmo=400, nofl=0, ord=0, ptau=2, rot=1, nost=0, tc=8, strict=1, early=1, xe=1, xo=2, ld1=1, ld2=20, ne=2, xw=12, pf=1, t3a=3, t3s=1, nb=7, seq=15, wb=0, wbn=8, st6=5, st7=8, st8=11)
FLG = {0:"",1:" nt",2:" sc1",3:" sc0 sc1",4:" sc0 sc1 nt",5:" sc1 nt"}
for a in sys.argv[1:]:
    k, v = a.split("="); opt[k] = int(v)
import asmgen
asmgen.TC[0] = opt["tc"]; asmgen.TC[1] = opt["strict"]
V = lambda lo, n=1: Reg("v", lo, n)
A_ = lambda lo, n=1: Reg("a", lo, n)
S = lambda lo, n=1: Reg("s", lo, n)
def P(i, pr=(), pw=(), **kw):
    i.x["pr"] = list(i.x.get("pr", [])) + list(pr); i.x["pw"] = list(i.x.get("pw", [])) + list(pw); i.x.update(kw); return i
VMO = ["#VM"]
def vm(i, **kw): return P(i, pr=VMO, pw=VMO, **kw)
SRD_X, SRD_W, SRD_O, SRD_N, SRD_WO, SRD_D = S(16,4), S(20,4), S(24,4), S(28,4), S(32,4), S(36,4)
def srd(d, p, nbytes):
    return [salu(f"s_mov_b32 s{d.lo}, s{p}", [f"s{p}"], [f"s{d.lo}"]),
            salu(f"s_and_b32 s{d.lo+1}, s{p+1}, 0xffff", [f"s{p+1}"], [f"s{d.lo+1}", "scc"]),
            salu(f"s_mov_b32 s{d.lo+2}, {nbytes}", [], [f"s{d.lo+2}"]),
            salu(f"s_mov_b32 s{d.lo+3}, 0x20000", [], [f"s{d.lo+3}"])]
NOFF = 73728
MOFF = 81920
vLANE = V(1); vXO = [V(2+t) for t in range(4)]; vSO3 = V(6); vL16 = V(7)
vNR = [V(8), V(9), V(10)]; vND = V(11); vNINF = V(15)
TMP = lambda tq, k: V(16 + (tq & 1)*4 + k)
WB3 = lambda s: A_(144 + s*4, 4)
TF3 = lambda v: A_(168 + v*4, 4)
vM3, vE, vR8 = V(25), V(26), V(27)
T3B, U3D = 73728, 81920
SA = lambda tk, tq: V(32 + (tk*4+tq)*4, 4)
ACC = lambda b, t: V(96 + b*16 + t*4, 4)
TF = lambda v, t: V(128 + (v & 1)*16 + t*4, 4)
PF = lambda tq, ks: V(160 + (tq*2+ks)*4, 4)
def UF(tau, ks):
    base = 192 + tau*8 if tau < 8 else 128 + (tau-8)*8
    return V(base + ks*4, 4)
X = lambda t, s: A_(t*24 + s*4, 4)
WB = lambda b, s: A_(96 + b*24 + s*4, 4)
sWAVE, sC, sMASK, sW6 = "s40", "s42", S(44, 2), "s49"
sCNT, sJOB, sLIM, sMODE, sFLAG = "s73", "s74", "s75", "s77", "s78"

SCR = 147456
pAf = [[A_(144 + (b*6+ks)*4, 4) for ks in range(6)] for b in range(2)]
pBf = [[V(176 + (a*6+ks)*4, 4) for ks in range(6)] for a in range(2)]
pD = [[V(224 + (a*2+b)*4, 4) for b in range(2)] for a in range(2)]
pO = [V(240 + a*4, 4) for a in range(2)]
sPV, sPS = "s54", "s55"
def scr_off(fb, n): return (n*1024 if n < 10 else 43008 + (n-10)*1024) if fb else n*1024
def prod_issue(fb=0):
    SB = 0 if fb else SCR
    o = []
    sv, st, t0, t1 = sPV, sPS, "s52", "s53"
    o.append(salu(f"s_mul_i32 {sv}, {sJOB}, 43", [sJOB], [sv]))
    o.append(salu(f"s_lshr_b32 {sv}, {sv}, 8", [sv], [sv, "scc"]))
    o.append(salu(f"s_mul_i32 {t0}, {sv}, 6", [sv], [t0]))
    o.append(salu(f"s_sub_u32 {st}, {sJOB}, {t0}", [sJOB, t0], [st, "scc"]))
    vi, vg, va, vb, vt = (V(16+k) for k in range(5))
    o.append(valu("v_and_b32", vi, 15, vLANE))
    o.append(valu("v_lshrrev_b32", vg, 4, vLANE))
    o.append(valu("v_lshrrev_b32", vt, 2, vi))
    o.append(valu("v_and_b32", vb, 3, vi))
    o.append(valu("v_lshl_add_u32", va, vt, 3, vb))
    o.append(valu("v_mul_u32_u24", va, 1152, va))
    o.append(valu("v_lshl_add_u32", va, vg, 4, va))
    o.append(salu(f"s_mul_i32 {t0}, {st}, {32*1152}", [st], [t0]))
    o.append(valu("v_add_u32", va, t0, va))
    o.append(valu("v_lshl_add_u32", V(21), vg, 3, vt))
    o.append(valu("v_lshlrev_b32", V(21), 6, V(21)))
    o.append(valu("v_lshl_add_u32", V(21), vb, 4, V(21)))
    o.append(valu("v_add_u32", V(21), SB, V(21)))
    o.append(valu("v_lshrrev_b32", vt, 2, vLANE))
    o.append(valu("v_mul_u32_u24", vt, 384, vt))
    o.append(valu("v_and_b32", vb, 3, vLANE))
    o.append(valu("v_lshl_add_u32", vb, vb, 4, vt))
    o.append(salu(f"s_lshl_b32 {t0}, {sv}, 6", [sv], [t0, "scc"]))
    o.append(valu("v_add_u32", vb, t0, vb))
    o.append(salu(f"s_movk_i32 {t1}, {4*1152}", [], [t1]))
    for n in range(12):
        o.append(salu(f"s_mov_b32 {t0}, {n*16*384}", [], [t0]))
        o.append(salu(f"s_mov_b32 m0, {SB + scr_off(fb, n)}", [], ["m0"]))
        o.append(vm(dma(vb, SRD_WO, t0)))
    for ks in range(6):
        for b in range(2): o.append(vm(bload("buffer_load_dwordx4", pAf[b][ks], va, SRD_W, t1 if b else 0, 768 + 64*ks)))
    return o
def mprod():
    o = []
    sv, st, t0, t1 = sPV, sPS, "s52", "s53"
    o.append(salu(f"s_mul_i32 {sv}, {sJOB}, 43", [sJOB], [sv]))
    o.append(salu(f"s_lshr_b32 {sv}, {sv}, 8", [sv], [sv, "scc"]))
    o.append(salu(f"s_mul_i32 {t0}, {sv}, 6", [sv], [t0]))
    o.append(salu(f"s_sub_u32 {st}, {sJOB}, {t0}", [sJOB, t0], [st, "scc"]))
    vi, vg, va, vb, vt = (V(16+k) for k in range(5))
    o.append(valu("v_and_b32", vi, 15, vLANE))
    o.append(valu("v_lshrrev_b32", vg, 4, vLANE))
    o.append(valu("v_lshrrev_b32", vt, 2, vi))
    o.append(valu("v_and_b32", vb, 3, vi))
    o.append(valu("v_lshl_add_u32", va, vt, 3, vb))
    o.append(valu("v_mul_u32_u24", va, 1152, va))
    o.append(valu("v_lshl_add_u32", va, vg, 4, va))
    o.append(salu(f"s_mul_i32 {t0}, {sv}, {32*1152}", [sv], [t0]))
    o.append(valu("v_add_u32", vb, t0, va))
    o.append(salu(f"s_mul_i32 {t0}, {st}, {32*1152}", [st], [t0]))
    o.append(valu("v_add_u32", va, t0, va))
    o.append(salu(f"s_movk_i32 {t1}, {4*1152}", [], [t1]))
    for ks in range(6):
        for b in range(2):
            o.append(vm(bload("buffer_load_dwordx4", pAf[b][ks], va, SRD_W, t1 if b else 0, 64*ks)))
            o.append(vm(bload("buffer_load_dwordx4", pBf[b][ks], vb, SRD_W, t1 if b else 0, 384 + 64*ks)))
    o.append(wait(vm=0))
    return o + prod_compute(0, 1)
def prod_compute(fb=0, isM=0):
    o = []
    sv, st, t0, t1 = sPV, sPS, "s52", "s53"
    for ks in range(6 if not isM else 0):
        for a in range(2):
            for h in range(2):
                o.append(ds_read("ds_read_b64_tr_b16", pBf[a][ks].sub(2*h, 2), V(21), scr_off(fb, 2*ks) + h*256 + 8*a))
    for ks in range(6):
        for a in range(2):
            for b in range(2):
                o.append(mfma(pD[a][b], pAf[b][ks], pBf[a][ks], None if ks == 0 else pD[a][b]))
    o.append(salu(f"s_mul_i32 {t0}, {sv}, 12288", [sv], [t0]))
    o.append(salu(f"s_lshl_b32 {t1}, {st}, 10", [st], [t1, "scc"]))
    o.append(salu(f"s_add_u32 {t0}, {t0}, {t1}", [t0, t1], [t0, "scc"]))
    if isM: o.append(salu(f"s_add_u32 {t0}, {t0}, {NOFF}", [t0], [t0, "scc"]))
    o.append(salu(f"s_add_u32 {t1}, {t0}, 6144", [t0], [t1, "scc"]))
    for a in range(2):
        for b in range(2):
            o.append(cvtpk(pO[a][2*b], pD[a][b][0], pD[a][b][1])); o.append(cvtpk(pO[a][2*b+1], pD[a][b][2], pD[a][b][3]))
        o.append(vm(bstore("buffer_store_dwordx4", pO[a], vL16, SRD_N, t1 if a else t0, 0, " sc1")))
    o.append(raw("s_nop 1"))
    return o
vPA, vPQ = V(22), V(23)
def slow_path():
    o = [label("L_slowN"), salu(f"s_movk_i32 {sCNT}, {opt['tmo']}", [], [sCNT]), label("L_pollN")]
    o.append(raw("s_sleep 4"))
    o.append(raw(f"buffer_load_dword {vPQ}, {vPA}, {SRD_D}, 0 offen offset:132 sc1", regs_of(vPA, SRD_D), regs_of(vPQ), "vload_untracked"))
    o.append(raw("s_waitcnt vmcnt(0)"))
    o.append(valu("v_cmp_ne_u32", "vcc", 0x01010101, vPQ))
    o.append(salu("s_cmp_eq_u64 vcc, 0", ["vcc"], ["scc"]))
    o.append(raw("s_cbranch_scc1 L_okN", ["scc"]))
    o.append(salu(f"s_sub_u32 {sCNT}, {sCNT}, 1", [sCNT], [sCNT, "scc"]))
    o.append(raw("s_cbranch_scc0 L_pollN", ["scc"]))
    o.append(salu(f"s_mov_b32 {sJOB}, 0", [], [sJOB]))
    o.append(label("L_fb"))
    o += prod_issue(1) + [wait(vm=0)] + prod_compute(1)
    o.append(salu(f"s_add_u32 {sJOB}, {sJOB}, 1", [sJOB], [sJOB, "scc"]))
    o.append(salu(f"s_cmp_lt_u32 {sJOB}, 36", [sJOB], ["scc"]))
    o.append(raw("s_cbranch_scc1 L_fb", ["scc"]))
    o.append(wait(vm=0))
    o.append(raw("s_branch L_okN"))
    o += [label("L_slowM"), salu(f"s_movk_i32 {sCNT}, {opt['tmo']}", [], [sCNT]), label("L_pollM")]
    o.append(raw(f"s_sleep {opt['bo']}"))
    o.append(raw(f"buffer_load_dword {vPQ}, off, {SRD_D}, 0 offset:128 sc1", regs_of(vPA, SRD_D), regs_of(vPQ), "vload_untracked"))
    o.append(raw("s_waitcnt vmcnt(0)"))
    o.append(valu("v_cmp_ne_u32", "vcc", 0x01010101, vPQ))
    o.append(salu("s_cmp_eq_u64 vcc, 0", ["vcc"], ["scc"]))
    o.append(raw("s_cbranch_scc1 L_okM", ["scc"]))
    o.append(salu(f"s_sub_u32 {sCNT}, {sCNT}, 1", [sCNT], [sCNT, "scc"]))
    o.append(raw("s_cbranch_scc0 L_pollM", ["scc"]))
    o.append(salu(f"s_mov_b32 {sJOB}, 0", [], [sJOB]))
    o.append(label("L_fbM"))
    o += mprod()
    o.append(salu(f"s_add_u32 {sJOB}, {sJOB}, 1", [sJOB], [sJOB, "scc"]))
    o.append(salu(f"s_cmp_lt_u32 {sJOB}, 36", [sJOB], ["scc"]))
    o.append(raw("s_cbranch_scc1 L_fbM", ["scc"]))
    o.append(wait(vm=0))
    o.append(raw("s_branch L_okM"))
    return finish(o)[0]

def stamp(k):
    return [P(raw(f"s_memtime s[{84+2*k}:{85+2*k}]", [], [], "smem"), pr=["#LDS"], pw=["#LDS"])] if opt["stamps"] else []

def main_kernel():
    pre = []
    if opt["stamps"]: pre.append(raw("s_memrealtime s[80:81]")); pre.append(raw("s_memtime s[84:85]")); pre.append(raw("s_memtime s[94:95]"))
    pre.append(raw("s_load_dwordx8 s[4:11], s[0:1], 0", ["s0","s1"], R("s",4,8), "smem"))
    pre.append(raw("s_load_dwordx4 s[12:15], s[0:1], 32", ["s0","s1"], R("s",12,4), "smem"))
    pre.append(salu("s_cmp_ge_u32 s2, 256", ["s2"], ["scc"]))
    pre.append(raw("s_cbranch_scc1 L_end", ["scc"]))
    t0, t1, t2, t3 = V(12), V(13), V(14), V(15)
    if opt["pf"]:
        pre.append(raw("s_getpc_b64 s[74:75]", [], ["s74", "s75"]))
        pre.append(salu("s_lshr_b32 s50, s2, 3", ["s2"], ["s50", "scc"]))
        pre.append(salu("s_lshl_b32 s50, s50, 8", ["s50"], ["s50", "scc"]))
        pre.append(valu("v_add_u32", t0, "s50", "v0"))
        pre.append(salu("s_and_b32 s74, s74, 0xffffff00", ["s74"], ["s74", "scc"]))
        pre.append(valu("v_and_b32", t0, 0x7ff, t0))
        pre.append(valu("v_lshlrev_b32", t0, 4, t0))
        pre.append(valu("v_min_u32", t0, f"L_cend-{KN}-16", t0))
        pre.append(raw(f"global_load_dwordx4 v[244:247], {t0}, s[74:75]", ["v12", "s74", "s75"], [], "vload_untracked"))
    pre.append(valu("v_and_b32", vLANE, 63, "v0"))
    pre.append(valu("v_lshrrev_b32", t0, 6, "v0"))
    pre.append(valu("v_readfirstlane_b32", sWAVE, t0, k="rfl"))
    pre.append(valu("v_lshlrev_b32", vL16, 4, vLANE))
    pre.append(salu("s_lshr_b32 s50, s2, 3", ["s2"], ["s50", "scc"]))
    pre.append(salu("s_and_b32 s51, s2, 7", ["s2"], ["s51", "scc"]))
    pre.append(salu("s_lshl_b32 s51, s51, 2", ["s51"], ["s51", "scc"]))
    pre.append(salu(f"s_add_u32 s51, s51, {sWAVE}", ["s51", sWAVE], ["s51", "scc"]))
    pre.append(salu(f"s_mul_i32 s50, s50, {7*224*384}", ["s50"], ["s50"]))
    pre.append(salu(f"s_mul_i32 s51, s51, {7*384}", ["s51"], ["s51"]))
    pre.append(salu("s_add_u32 s50, s50, s51", ["s50", "s51"], ["s50", "scc"]))
    pre.append(salu("s_mov_b32 s47, s50", ["s50"], ["s47"]))
    pre.append(valu("v_and_b32", t0, 15, vLANE))
    pre.append(valu("v_lshrrev_b32", t1, 4, vLANE))
    pre.append(valu("v_lshlrev_b32", t2, 4, t1))
    pre.append(valu("v_add_u32", t2, "s50", t2))
    for t in range(3):
        pre.append(valu("v_add_u32", t3, 16*t, t0))
        pre.append(valu("v_mul_u32_u24", vXO[t], 37, t3))
        pre.append(valu("v_lshrrev_b32", vXO[t], 8, vXO[t]))
        pre.append(valu("v_mul_u32_u24", vXO[t], 217, vXO[t]))
        pre.append(valu("v_add_u32", vXO[t], vXO[t], t3))
        pre.append(valu("v_mul_u32_u24", vXO[t], 384, vXO[t]))
        pre.append(valu("v_add_u32", vXO[t], vXO[t], t2))
    pre.append(valu("v_add_u32", vXO[3], (6*224+6)*384, t2))
    pre.append(salu(f"s_lshl_b32 {sJOB}, {sWAVE}, 8", [sWAVE], [sJOB, "scc"]))
    pre.append(salu(f"s_add_u32 {sJOB}, {sJOB}, s2", [sJOB, "s2"], [sJOB, "scc"]))
    pre.append(salu(f"s_mul_i32 {sW6}, {sWAVE}, 6144", [sWAVE], [sW6]))
    pre.append(wait(lgkm=0))
    pre += srd(SRD_W, 6, 192*576*2) + srd(SRD_X, 4, XBYTES) + srd(SRD_N, 14, 0x200000 if opt["stamps"] else 2*NOFF) + srd(SRD_WO, 8, 192*192*2) + srd(SRD_D, 12, 256)
    pre = finish(pre)[0]
    stp = "s_memtime s[94:95]\n    " if opt["stamps"] else ""
    flx = lambda off: f"buffer_store_byte v16, v17, {SRD_D}, {sJOB} offen offset:{off} sc1\n    "
    fin = lambda off, no: f"s_waitcnt vmcnt(0)\n    v_mov_b32 v16, 1\n    v_mov_b32 v17, 0\n    s_mov_b64 exec, 1\n    {'' if no else flx(off)}{stp}s_mov_b64 exec, -1\n"
    finM = (f"s_waitcnt vmcnt(0)\n    v_mov_b32 v16, 1\n    s_mov_b64 exec, 1\n    buffer_atomic_add v16, off, {SRD_D}, 0 offset:64 sc0 sc1\n    s_waitcnt vmcnt(0)\n"
            f"    v_readfirstlane_b32 s52, v16\n    v_mov_b32 v16, 0x01010101\n    s_cmp_lg_u32 s52, {35 + 100*opt['noflm']}\n    s_cbranch_scc1 L_nl\n"
            f"    buffer_store_dword v16, off, {SRD_D}, 0 offset:128 sc1\nL_nl:\n    {stp}s_mov_b64 exec, -1\n")
    pre.append(raw(f"s_mov_b32 {sMODE}, 0\n    s_cmp_ge_u32 {sJOB}, 72\n    s_cbranch_scc1 L_np1\n    s_setprio 3\n    s_mov_b32 {sMODE}, 1\n    s_cmp_ge_u32 {sJOB}, 36\n    s_cbranch_scc1 L_pn\n    "
        + text(finish(mprod())[0]).strip() + "\n    " + finM + f"    s_setprio 0\n    s_branch L_np1\nL_pn:\n    s_sub_u32 {sJOB}, {sJOB}, 36\n    s_mov_b32 {sMODE}, 2\n    "
        + text(finish(prod_issue())[0]).strip() + "\nL_np1:", [], []))
    q = []
    def wpiece(kk, m, j):
        imm = m*384 + kk*128
        return [salu(f"s_add_u32 m0, {sL[j]}, {kk*49152 + m*24576 - imm}", [sL[j]], ["m0", "scc"]),
                vm(dma(vWA, SRD_W, sJ[j], f" offset:{imm}"), tag=f"W{kk}")]
    xl = []
    vXR = [[V(248+2*t+h) for h in range(2)] for t in range(4)]
    sXA, sXBb = "s68", "s69"
    xcnt = [0]
    RAW = lambda r, j: A_(48 + ((r-4)*3 + j)*4, 4)
    def xsetup(B):
        vXC = [V(B+j) for j in range(3)]; vXB = V(B+3); vL7 = V(B+4); u0, u1 = V(B+5), V(B+6)
        o = [valu("v_lshrrev_b32", u0, 3, vLANE), valu("v_lshlrev_b32", vXB, 7, u0), valu("v_add_u32", vXB, "s47", vXB), valu("v_and_b32", vL7, 7, vLANE)]
        for j in range(3):
            o += [valu("v_add_u32", u1, 8*j, u0), valu("v_mul_u32_u24", u1, 43, u1), valu("v_lshrrev_b32", vXC[j], 7, u1)]
        return o
    def xmask(d):
        d.t = "s_mov_b64 exec, s[70:71]\n    " + d.t + "\n    s_mov_b64 exec, -1"; d.rd |= {"s70", "s71"}; return d
    def xdma(r, B=200, reg=0):
        vXC = [V(B+j) for j in range(3)]; vXB = V(B+3); vL7 = V(B+4); vXT = [V(B+5), V(B+6), V(B+7)]
        o = []
        o.append(salu(f"s_mov_b32 s50, {r*86016}", [], ["s50"]))
        if not reg: o.append(salu(f"s_add_u32 m0, {sXA if r < 4 else sXBb}, {(r if r < 4 else r-4)*2688}", [sXA, sXBb], ["m0", "scc"]))
        for j in range(3):
            t = vXT[xcnt[0] % 3]; xcnt[0] += 1
            o.append(valu("v_add_u32", t, 7*r, vXC[j]))
            o.append(valu("v_bfe_u32", t, t, 1, 3))
            o.append(valu("v_xor_b32", t, t, vL7))
            o.append(valu("v_lshl_add_u32", t, t, 4, vXB))
            if reg: d = vm(bload("buffer_load_dwordx4", RAW(r, j), t, SRD_X, "s50", j*1024, FLG[opt["xfl"]]))
            else: d = vm(dma(t, SRD_X, "s50", f" offset:{j*1024}" + FLG[opt["xfl"]]), tag=f"XR{r}")
            o.append(xmask(d) if j == 2 else d)
        return o
    def wmix(kk, nx):
        o = []; ws = [wpiece(kk, m, j) for m in range(2) for j in range(6)]
        done = 0
        for n, w in enumerate(ws):
            o += w
            want = (nx * (n+1) // 12) // 2 * 2
            while done < want: o.append(xl.pop(0)); done += 1
        return o
    XS = (0, 0, 0)
    q.append(salu("s_mov_b32 s70, -1", [], ["s70"])); q.append(salu("s_movk_i32 s71, 0xff", [], ["s71"]))
    q += xsetup(200)
    q.append(salu(f"s_mul_i32 {sXA}, {sWAVE}, 10752", [sWAVE], [sXA]))
    q.append(salu(f"s_lshl_b32 {sXBb}, {sWAVE}, 13", [sWAVE], [sXBb, "scc"]))
    q.append(salu(f"s_add_u32 {sXBb}, {sXBb}, 49152", [sXBb], [sXBb, "scc"]))
    rows = lambda rs: text(finish([i for r in rs for i in xdma(r)])[0]).strip()
    pe = opt["pearly"]
    slp = f"s_cmp_eq_u32 {sMODE}, 2\n    s_cbranch_scc1 L_x1\n    s_sleep {opt['hs']}\nL_x1:\n    " if opt["hs"] else ""
    tx = f"s_cmp_eq_u32 {sMODE}, 1\n    s_cbranch_scc1 L_pw\n    " + slp + rows(range(pe)) + "\n    s_cmp_ge_u32 s2, 36\n    s_cbranch_scc1 L_x2\n    s_barrier\n    s_branch L_x2\nL_pw:\n    s_barrier\n    "
    ncmp = f"\n    s_cmp_lg_u32 {sMODE}, 2\n    s_cbranch_scc1 L_x3\n    s_waitcnt vmcnt({3*pe if opt['nsp'] else 21})\n    s_nop 4\n    " + text(finish(prod_compute() + (xsetup(200) if opt['nsp'] else []))[0]).strip() + "\n    s_setprio 0\n    s_nop 4\nL_x3:\n    "
    tx += rows(range(pe)) + "\nL_x2:\n    " + (ncmp if opt['nsp'] else "") + rows(range(pe, 7)) + ("" if opt['nsp'] else ncmp)
    q.append(raw("s_nop 4\n    " + tx, [], []))
    q += srd(SRD_O, 10, XBYTES)
    q.append(salu(f"s_lshl_b32 s52, {sWAVE}, 2", [sWAVE], ["s52", "scc"]))
    q.append(valu("v_cmp_eq_u32", "vcc", "s52", t0))
    q.append(valu("v_mov_b32", vSO3, 0x7f000000))
    q.append(valu("v_cndmask_b32", vSO3, vSO3, vXO[3], "vcc"))
    q.append(valu("v_mov_b32", vNR[0], vL16))
    q.append(valu("v_add_u32", vNR[1], 49152, vL16))
    q.append(valu("v_add_u32", vNR[2], 98304, vL16))
    q.append(valu("v_add_u32", vND, sW6, vL16))
    q.append(valu("v_mov_b32", vPA, 0))
    q.append(valu("v_mov_b32", vNINF, 0xff800000))

    c = 192 ** -0.5 * math.log2(math.e)
    q.append(salu(f"s_mov_b32 {sC}, 0x{struct.unpack('<I', struct.pack('<f', c))[0]:08x}", [], [sC]))
    q.append(salu(f"s_mov_b32 s43, {sC}", [sC], ["s43"]))
    q.append(salu(f"s_mov_b64 {sMASK}, 0xffff", [], sMASK.regs()))
    q.append(salu(f"s_lshl_b32 s52, {sWAVE}, 4", [sWAVE], ["s52", "scc"]))
    q.append(salu(f"s_lshl_b64 {sMASK}, {sMASK}, s52", sMASK.regs() + ["s52"], sMASK.regs() + ["scc"]))
    q += stamp(1)
    u0, u1 = V(205), V(206)
    q.append(valu("v_add_u32", V(31), sXBb, vL16))
    q.append(salu(f"s_sub_u32 s52, {sXBb}, 10752", [sXBb], ["s52", "scc"]))
    q.append(valu("v_lshrrev_b32", u0, 1, t0))
    q.append(valu("v_xor_b32", u0, u0, t1))
    q.append(valu("v_lshlrev_b32", u0, 4, u0))
    q.append(valu("v_mul_u32_u24", u1, 384, t0))
    q.append(valu("v_add_u32", u0, u0, u1))
    q.append(valu("v_add_u32", vXR[0][0], sXA, u0))
    q.append(valu("v_add_u32", vXR[2][0], "s52", u0))
    q.append(valu("v_cmp_gt_u32", "vcc", 12, t0))
    q.append(valu("v_cndmask_b32", vXR[1][0], vXR[2][0], vXR[0][0], "vcc"))
    q.append(valu("v_add_u32", vXR[1][0], 16*384, vXR[1][0]))
    q.append(valu("v_add_u32", vXR[2][0], 32*384, vXR[2][0]))
    q.append(valu("v_lshlrev_b32", u1, 4, t1))
    q.append(valu("v_lshrrev_b32", u0, 2, t0))
    q.append(valu("v_lshl_add_u32", u1, u0, 13, u1))
    q.append(valu("v_add_u32", vXR[3][0], 49152 + 20*384, u1))
    q.append(valu("v_add_u32", vM3, MOFF, vND))
    for t in range(4): q.append(valu("v_xor_b32", vXR[t][1], 64, vXR[t][0]))

    p = []
    def sync(tag, rdregs, after=(), lg=None):
        w = I("WAIT", rdregs, [], "wait", {"tag": tag, "lgkm": lg, "vm": None})
        p.append(P(w, pr=["#LDS", "#VM"] + list(after), pw=["#LDS", "#VM"], fence=1))
        p.append(P(barrier(), pr=["#LDS"], pw=["#LDS"], fence=1))
    def wdma(base, part, tag, out):
        for half in range(2):
            off = part*24576 + half*4096
            out.append(salu(f"s_mov_b32 s50, {off + (NOFF if base else 0)}", [], ["s50"]))
            out.append(salu(f"s_add_u32 m0, {sW6}, {off + base}", [sW6], ["m0", "scc"]))
            for jj in range(4 if half == 0 else 2):
                out.append(vm(dma(vND, SRD_N, "s50", f" offset:{jj*1024}" + FLG[opt["mml" if base else "mfl"]]), tag=tag))
    def reads(n):
        for s in range(6):
            off = MOFF + (n*6 + s)*1024 if n < 12 else ((n-12)*6 + s)*1024
            bi = min(off // 49152, 2)
            p.append(P(ds_read("ds_read_b128", WB(n & 1, s), vNR[bi], off - bi*49152), pr=["#LDS"]))
    AC3 = lambda k: ACC(k & 1, 3)
    T3T = {opt["t3a"] + opt["t3s"]*k: k for k in range(3)}
    NB = opt["nb"]
    U3T = {NB + 1 + k: k for k in range(3)}
    assert NB + 3 <= 10 and max(T3T) < NB
    def reads3(k, isN):
        for s in range(6):
            p.append(P(ds_read("ds_read_b128", WB3(s), vND if isN else vM3, k*24576 + s*1024), pr=["#LDS"]))
    def out3(k):
        c = AC3(k)
        p.append(cvtpk(c[0], c[0], c[1])); p.append(cvtpk(c[1], c[2], c[3]))
        p.append(P(ds_write("ds_write_b64", vE, c.sub(0, 2), k*2048), pr=["#LDS"], pw=["#E"]))
    def tgroup(tau):
        b = tau & 1
        for s in range(6):
            for t in range(3):
                i = mfma(ACC(b, t), WB(b, s), X(t, s), None if s == 0 else ACC(b, t))
                if s == 3 and t == 0: P(i, pw=[f"#g{tau}"])
                p.append(i)
            if tau in T3T: p.append(mfma(AC3(T3T[tau]), WB3(s), X(3, s), None if s == 0 else AC3(T3T[tau])))
            if tau in U3T: p.append(mfma(AC3(U3T[tau]), X(3, s), WB3(s), None if s == 0 else AC3(U3T[tau])))
    def tcvts(tau):
        a = tau & 1
        for t in range(3):
            d = TF(tau >> 1, t)
            p.append(cvtpk(d[2*a], ACC(a, t)[0], ACC(a, t)[1])); p.append(cvtpk(d[2*a+1], ACC(a, t)[2], ACC(a, t)[3]))
        if tau in T3T: out3(T3T[tau])
        if tau in U3T and tau != 10: out3(U3T[tau])
    def sblock(v):
        for tq in range(3):
            for tk in range(4):
                p.append(mfma(SA(tk, tq), X(tk, v), TF(v, tq), None if v == 0 else SA(tk, tq)))
    def sblock3():
        for v in range(6):
            for tk in range(4):
                p.append(mfma(SA(tk, 3), X(tk, v), TF3(v), None if v == 0 else SA(tk, 3)))
    def ugroup(tau):
        b = tau & 1
        for s in range(6):
            for t in range(3):
                p.append(mfma(ACC(b, t), X(t, s), WB(b, s), None if s == 0 else ACC(b, t)))
    def ucvts(tau):
        b = tau & 1
        for t in range(3):
            d = UF(tau, t >> 1)
            p.append(cvtpk(d[2*(t&1)], ACC(b, t)[0], ACC(b, t)[1])); p.append(cvtpk(d[2*(t&1)+1], ACC(b, t)[2], ACC(b, t)[3]))
    def xlane(op, m, m2):
        for sw in ("v_permlane32_swap_b32", "v_permlane16_swap_b32"):
            p.append(valu("v_mov_b32", m2, m))
            p.append(I(f"{sw} {m}, {m2}", regs_of(m, m2), regs_of(m, m2), "perm"))
            p.append(valu(op, m, m, m2))
    def softmax(tq):
        n0_ = len(p)
        m, m2, s1, s2 = (TMP(tq, k) for k in range(4))
        vals = [SA(tk, tq)[r] for tk in range(3) for r in range(4)] + [SA(3, tq)[0]]
        L = vals[12]
        p.append(valu("v_cndmask_b32", L, vNINF, L, sMASK))
        p.append(valu("v_max3_f32", m, vals[0], vals[1], vals[2]))
        p.append(valu("v_max3_f32", m2, vals[3], vals[4], vals[5]))
        p.append(valu("v_max3_f32", m, m, vals[6], vals[7]))
        p.append(valu("v_max3_f32", m2, m2, vals[8], vals[9]))
        p.append(valu("v_max3_f32", m, m, vals[10], vals[11]))
        p.append(valu("v_max3_f32", m, m, m2, L))
        xlane("v_max_f32", m, m2)
        p.append(valu("v_mul_f32", m, sC, m))
        for k, v in enumerate(vals):
            p.append(valu("v_fma_f32", v, v, sC, "-" + str(m)))
            p.append(valu("v_exp_f32", v, v, k="trans"))
            if k == 3: p.append(valu("v_add_f32", s1, vals[0], vals[1]))
            if k == 4: p.append(valu("v_add_f32", s2, vals[2], vals[3]))
            if k >= 5: p.append(valu("v_add_f32", (s1, s2)[k & 1], (s1, s2)[k & 1], vals[k-1]))
        p.append(valu("v_add_f32", s2, s2, L))
        p.append(valu("v_add_f32", s1, s1, s2))
        xlane("v_add_f32", s1, s2)
        p.append(valu("v_rcp_f32", s1, s1, k="trans"))
        for k in range(6):
            for h in range(2): p.append(valu("v_mul_f32", vals[2*k+h], vals[2*k+h], s1))
            p.append(cvtpk(PF(tq, k >> 2)[k & 3], vals[2*k], vals[2*k+1]))
        p.append(valu("v_mul_f32", L, L, s1))
        p.append(cvtpk(PF(tq, 1)[2], L, 0))
        p.append(valu("v_mov_b32", PF(tq, 1)[3], 0))
        for i in p[n0_:]: i.x["bg"] = 1
    OA = lambda b, a, tq: V(32 + b*32 + (a*4+tq)*4, 4)
    OUT = lambda k: V(16 + (k % 4)*4, 4)
    cnt = [0]
    def omf(v, tq, a):
        for ks in range(2):
            p.append(mfma(OA(v & 1, a, tq), UF(2*v+a, ks), PF(tq, ks), None if ks == 0 else OA(v & 1, a, tq)))
    def ost(v, tq):
        b = v & 1; o = OA(b, 0, tq)
        for a in range(2):
            p.append(cvtpk(o[2*a], OA(b, a, tq)[0], OA(b, a, tq)[1])); p.append(cvtpk(o[2*a+1], OA(b, a, tq)[2], OA(b, a, tq)[3]))
        p.append(vm(bstore("buffer_store_dwordx4", o, vXO[tq] if tq < 3 else vSO3, SRD_O, 0, 64*v, FLG[opt["sfl"]])))
    def ounit(v, tq): omf(v, tq, 0); omf(v, tq, 1); ost(v, tq)
    PRODREGS = R("v", 176, 72) + R("v", 16, 6) + ["v23"] + R("s", 52, 4) + ["vcc", "m0"]
    FA = lambda buf, sp, b: A_(96 + buf*48 + (sp*2+b)*4, 4)
    FB = lambda buf, vp, a: A_(96 + buf*48 + 24 + (vp*2+a)*4, 4)
    MD = lambda vp, a, sp, b: V(32 + (((vp*2+a)*3+sp)*2+b)*4, 4)
    def mreads(ks):
        kk, kh = ks >> 1, ks & 1
        base = 49152 if kk == 1 else 0
        for x in range(3):
            for y in range(2):
                p.append(P(ds_read("ds_read_b128", FA(ks & 1, x, y), vRA[kh], base + x*4096 + y*512), pr=["#LDS"]))
                p.append(P(ds_read("ds_read_b128", FB(ks & 1, x, y), vRB[kh], base + x*4096 + y*512), pr=["#LDS"]))
    def mgroup(ks):
        for vp in range(3):
            for a in range(2):
                for sp in range(3):
                    for b in range(2):
                        p.append(mfma(MD(vp, a, sp, b), FA(ks & 1, sp, b), FB(ks & 1, vp, a), None if ks == 0 else MD(vp, a, sp, b)))
    allF = [r for buf in range(2) for r in A_(96 + buf*48, 48).regs()]
    fl = "" if opt["nofl"] else f"buffer_store_byte v16, v17, {SRD_D}, {sJOB} offen sc1\n    "
    st = "s_memtime s[94:95]\n    " if opt["stamps"] else ""
    flag = P(raw(f"s_cmp_ge_u32 {sJOB}, 36\n    s_cbranch_scc1 L_np3\n    v_mov_b32 v16, 1\n    v_mov_b32 v17, 0\n    s_mov_b64 exec, 1\n    {fl}{st}s_mov_b64 exec, -1\nL_np3:", [sJOB], ["scc", "v16", "v17"]), pr=["#LDS", "#VM"], pw=["#LDS", "#VM"], fence=1)
    def mark(c):
        for k in (6, 7, 8):
            if opt[f"st{k}"] == c: p.extend(stamp(k))
    def xwait(tag): p.append(P(I("WAIT", [], [], "wait", {"tag": tag, "lgkm": None, "vm": None}), pr=["#LDS", "#VM"], pw=["#LDS", "#VM"], fence=1))
    def xreads(ts):
        for s in range(6):
            for t in ts: p.append(P(ds_read("ds_read_b128", X(t, s), vXR[t][s & 1], (s >> 1)*128), pr=["#LDS", "#XW"]))
    def stage(k0, lead, loads):
        n = len(p); mgroup(k0); mgroup(k0+1); g = p[n:]; del p[n:]
        P(g[max(lead, 1)-1], pw=[f"#ld{k0}"])
        p.extend(g)
        for i in loads:
            if i.k in ("dma", "vload"): P(i, pr=[f"#ld{k0}"])
            p.append(i)
    NP = opt["npo"]
    finN = (f"\n    s_cmp_lg_u32 {sMODE}, 2\n    s_cbranch_scc1 L_npA\n    v_mov_b32 v17, 1\n    s_mov_b64 exec, 1\n    buffer_atomic_add v17, off, {SRD_D}, 0 offset:0 sc0 sc1\n    s_waitcnt vmcnt(0)\n"
            f"    v_readfirstlane_b32 s52, v17\n    v_mov_b32 v17, 0x01010101\n    s_cmp_lg_u32 s52, {35 + 100*opt['nofl']}\n    s_cbranch_scc1 L_nf\n"
            f"    buffer_store_dword v17, off, {SRD_D}, 0 offset:132 sc1\nL_nf:\n    {stp}s_mov_b64 exec, -1")
    ld = lambda k: f"buffer_load_dword v{16+k}, off, {SRD_D}, 0 offset:128 sc1\n    "
    p.append(P(raw(f"s_cmp_lg_u32 {sWAVE}, 0\n    s_cbranch_scc1 L_npA\n    s_waitcnt vmcnt(0)\n    " + f"s_sleep {opt['psl']}\n    ".join(ld(k) for k in range(NP)).rstrip() + finN + "\nL_npA:",
                   [sWAVE] + regs_of(vPA), ["scc", "s52"] + R("v", 16, NP+1)), pr=["#LDS", "#VM"], pw=["#LDS", "#VM"], fence=1))
    mark(-1)
    chk = "".join(f"s_waitcnt vmcnt({NP-1-k})\n    v_cmp_ne_u32 vcc, 0x01010101, v{16+k}\n    s_nop 0\n    s_cmp_eq_u64 vcc, 0\n    s_cbranch_scc1 L_okM\n    " for k in range(NP))
    p.append(P(raw(f"s_cmp_lg_u32 {sWAVE}, 0\n    s_cbranch_scc1 L_wx\n    " + chk + "s_branch L_slowM\nL_wx:\n    s_waitcnt vmcnt(0)\nL_okM:", [sWAVE], PRODREGS + ["scc"] + A_(144, 48).regs()), pr=["#LDS", "#VM"], pw=["#LDS", "#VM"], fence=1))
    p.append(P(barrier(), pr=["#LDS"], pw=["#LDS", "#VM"], fence=1))
    mark(-3)
    for part in range(3): wdma(MOFF, part, f"M{part}", p)
    xreads([0, 1, 2, 3])
    sync(f"M{opt['ms']}", [])
    if opt["early"]: p.append(P(vm(bload("buffer_load_dword", vPQ, vPA, SRD_D, 0, 132, " sc1")), pr=["#LDS"]))
    mark(-4)
    p += stamp(2)
    reads(0)
    PT = opt["ptau"]
    assert opt["xe"] and opt["t3a"] > PT
    p.append(valu("v_lshlrev_b32", vR8, 3, vLANE))
    p.append(valu("v_add_u32", vR8, T3B, vR8))
    p.append(salu(f"s_lshl_b32 s50, {sWAVE}, 9", [sWAVE], ["s50", "scc"]))
    p.append(valu("v_add_u32", vE, "s50", vR8))
    for tau in range(12):
        last = tau == 11
        reads(tau+1)
        if tau in T3T: reads3(T3T[tau], 0)
        if tau in U3T: reads3(U3T[tau], 1)
        if tau == 11 and 10 in U3T: out3(U3T[10])
        gm = len(p); tgroup(tau); g = p[gm:]; del p[gm:]
        if tau == PT - 1 and not opt["early"]:
            p.append(P(vm(bload("buffer_load_dword", vPQ, vPA, SRD_D, 0, 132, " sc1")), pr=[f"#g{tau-1}"]))
        if tau == PT or last or tau == NB:
            p.extend(g[:10])
            if tau == PT:
                p.append(P(valu("v_cmp_ne_u32", "vcc", 0x01010101, vPQ), pr=[f"#g{tau}"], fence=1))
                p.append(P(salu("s_cmp_eq_u64 vcc, 0", ["vcc"], ["scc"]), fence=1))
                p.append(P(salu(f"s_cselect_b32 s52, 1, {sWAVE}", ["scc", sWAVE], ["s52"]), fence=1))
                p.append(P(salu("s_cmp_eq_u32 s52, 0", ["s52"], ["scc"]), fence=1))
                p.append(P(raw("s_cbranch_scc1 L_slowN\nL_okN:", ["scc"], PRODREGS), pr=["#LDS", "#VM"], pw=["#LDS", "#VM"], fence=1))
                sync("M2", [])
                nb = len(p)
                for part in range(3): wdma(0, part, "N", p)
                for i in p[nb:]: i.x["bg"] = 1
            elif tau == NB:
                sync("N", [], after=[f"#g{tau}", "#E"], lg=0)
                for v in range(6):
                    p.append(P(I(f"ds_read2st64_b64 {TF3(v)}, {vR8} offset0:{2*v} offset1:{2*v+1}", regs_of(vR8), regs_of(TF3(v)), "ds_read"), pr=["#LDS"]))
                p.append(valu("v_add_u32", vE, U3D, vE)); p.append(valu("v_add_u32", vR8, U3D, vR8))
            else:
                sync("none", [], after=[f"#g{tau}", "#E"], lg=0)
                p += stamp(3)
                for t2_ in range(8): p.append(P(ds_read("ds_read_b64", UF(t2_, 1).sub(2, 2), vR8, t2_*512), pr=["#LDS"], bg=1))
            p.extend(g[10:])
        else: p.extend(g)
        if tau > 0: tcvts(tau-1)
        if tau >= 2 and tau % 2 == 0: sblock(tau//2 - 1)
        if tau == NB: sblock3(); softmax(3)
    n1 = len([i for i in p if i.k == "mfma"])
    reads(13); ugroup(0); tcvts(11); sblock(5)
    ucvts(0)
    for t2_ in range(8, 12): p.append(P(ds_read("ds_read_b64", UF(t2_, 1).sub(2, 2), vR8, t2_*512), pr=["#LDS"]))
    SEQ = {
     1: {3: "00", 4: "10", 6: "20 01 11", 7: "21", 8: "30 31", 9: "02 12 22", 10: "32 40 41 42", 11: "03 13 23 33 43"},
     2: {3: "00", 4: "10", 5: "01", 6: "11 20 21", 8: "30 31 02 12", 9: "22 32", 10: "40 41 42 03 13", 11: "23 33 43"},
     3: {4: "00 10", 6: "20 01 11", 7: "21", 8: "30 31", 9: "02 12 22 32", 10: "40 41 42", 11: "03 13 23 33 43"},
     4: {4: "00 10", 6: "20", 7: "01 11 21", 8: "30 31", 10: "02 12 22 32 40 41 42", 11: "03 13 23 33 43"},
     5: {3: "00", 4: "10", 6: "20", 7: "01 11 21", 8: "30 31", 10: "40 41 02 12", 11: "22 32 42 50 51 52 03 13 23 33 43 53"},
     6: {4: "00 10", 6: "20", 7: "01 11 21", 8: "30 31", 10: "40 41 02 12 22", 11: "32 42 50 51 52 03 13 23 33 43 53"},
     7: {3: "00", 4: "10", 6: "20 01", 7: "11 21", 8: "30 31", 9: "02", 10: "40 41 12 22", 11: "32 42 50 51 52 03 13 23 33 43 53"},
     8: {3: "00", 4: "10", 6: "20", 7: "01 11", 8: "21 30", 9: "31", 10: "40 41", 11: "02 12 22 32 42 50 51 52 03 13 23 33 43 53"},
     9: {2: "03", 3: "00", 4: "10 13", 6: "20 23 01", 7: "11 21", 8: "30 31 33", 9: "02", 10: "12 22 32 40 41 42 43", 11: "50 51 52 53"},
     10: {2: "03", 4: "00 10 13", 6: "20 23", 7: "01 11 21", 8: "30 31 33", 10: "40 41 43 02 12 22", 11: "32 42 50 51 52 53"},
     11: {2: "03", 3: "00", 4: "10 13", 6: "20 23 01 11", 7: "21", 8: "30 31 33 02", 9: "12 22 32", 10: "40 41 42 43", 11: "50 51 52 53"},
     12: {2: "03", 4: "13 00 10", 6: "23 20", 7: "01 11 21", 8: "33 30 31", 9: "02 12", 10: "43 40 41 22 32 42", 11: "53 50 51 52"},
     13: {2: "03", 4: "13", 5: "00 10", 6: "20 23", 8: "30 33 01 11", 9: "21 31", 10: "40 43 41", 11: "50 53 51 02 12 22 32 42 52"},
     14: {2: "03", 4: "13 00", 5: "10", 6: "20 23", 7: "01", 8: "30 33 11 21", 9: "31", 10: "40 43 41 02", 11: "12 22 50 53 51 32 42 52"},
     15: {2: "03", 4: "13 00 10", 6: "20 23", 7: "01 11", 8: "21 30 33 31", 10: "40 43 41 02 12", 11: "22 32 50 53 51 42 52"},
     16: {2: "03", 4: "13 00 10", 6: "20 23", 7: "01 11 21", 8: "30 33 31", 10: "40 43 41 02 12 22 32", 11: "42 50 53 51 52"},
    }[opt["seq"]]
    for tq in range(3): softmax(tq)
    for tau in range(1, 12):
        if tau + 1 < 12: reads(12+tau+1)
        for k in (6, 7, 8):
            if tau == opt[f"st{k}"]: p.extend(stamp(k))
        if tau == opt["wb"]:
            p.append(P(raw(f"s_cmp_ge_u32 {sJOB}, {opt['wbn']}\n    s_cbranch_scc1 L_nwb\n    buffer_wbl2 sc1\nL_nwb:", [sJOB], ["scc"]), pr=["#VM"], pw=["#VM"]))
        ugroup(tau)
        ucvts(tau)
        for e in SEQ.get(tau, "").split(): ounit(int(e[0]), int(e[1]))
    if opt["seq"] < 5:
        for tq in range(4): omf(5, tq, 0)
        for tq in range(4): omf(5, tq, 1); ost(5, tq)
    n2 = n1 + 24 + 16 + 24*8 + 40
    mf = [i for i in p if i.k == "mfma"]
    mi = {id(i): n for n, i in enumerate(mf)}
    def perfn(j):
        n = mi[id(p[j])]
        return opt["per1"] if n < n1 + 40 else (opt["persm"] if n < n2 else opt["per2"])
    body, t = schedule(p, look=32, perfn=perfn)
    post = []
    if opt["stamps"]:
        post.append(raw("s_memtime s[92:93]")); post.append(raw("s_memrealtime s[82:83]"))
        post.append(wait(lgkm=0))
        post.append(salu("s_lshl_b32 s50, s2, 2")); post.append(salu(f"s_add_u32 s50, s50, {sWAVE}")); post.append(salu("s_lshl_b32 s50, s50, 6")); post.append(salu("s_add_u32 s50, s50, 0x100000"))
        for k, (a, b) in enumerate([("s80", None), ("s81", None), ("s82", None), ("s94", "s84"), ("s86", "s84"), ("s88", "s84"), ("s90", "s84"), ("s92", "s84"), ("s96", "s84"), ("s98", "s84"), ("s100", "s84"), ("s100", None)]):
            if b: post.append(salu(f"s_sub_u32 {a}, {a}, {b}"))
            post.append(valu("v_mov_b32", V(96+k), a))
        post.append(valu("v_mov_b32", V(108), 0))
        post.append(salu("s_mov_b64 exec, 1"))
        for k in range(3): post.append(bstore("buffer_store_dwordx4", V(96+4*k,4), V(108), SRD_N, "s50", 16*k))
    post.append(label("L_end")); post.append(raw("s_endpgm"))
    full, nn = finish(q + body + post)
    tail = slow_path()
    sys.stderr.write(f"main: {len(full)} instrs, mfma {len(mf)}, est cycles {t}, nop states {nn}\n")
    return pre + full + tail

print(f"""; swin window attention: M = Wq*Wk^T and N = Wv*Wo are computed once by 72 producer
; @launch grid=(256,1,1) block=(256,1,1) lds=163840
.amdgcn_target "amdgcn-amd-amdhsa--gfx950"
.text
.globl {KN}
.p2align 8
.type {KN},@function
{KN}:
{text(main_kernel())}
.p2align 6
L_cend:
.section .rodata,"a"
.p2align 6
.amdhsa_kernel {KN}
  .amdhsa_next_free_vgpr 448
  .amdhsa_next_free_sgpr 102
  .amdhsa_accum_offset 256
  .amdhsa_group_segment_fixed_size 0
  .amdhsa_kernarg_size 48
  .amdhsa_user_sgpr_count 2
  .amdhsa_user_sgpr_kernarg_segment_ptr 1
  .amdhsa_system_sgpr_workgroup_id_x 1
.end_amdhsa_kernel""")
```

```python
import sys, math, struct
from asmgen import *
KN = "standalone__swin_window_attn__vision_kernel"
XBYTES = 224*224*192*2
opt = dict(mml=2, psl=8, npo=1, pw=0, bo=2, hs=0, nsp=1, ab=1, nq=0, ms=0, xord=0, pearly=2, noflm=0, per1=2, per2=2, persm=2, stamps=0, xfl=1, sfl=0, mfl=2, tmo=400, nofl=0, ord=0, ptau=2, rot=1, nost=0, tc=8, strict=1, early=1, xe=1, xo=2, ld1=1, ld2=20, ne=2, xw=12, pf=1, t3a=3, t3s=1, nb=7, seq=15, wb=0, wbn=8, st6=5, st7=8, st8=11)
FLG = {0:"",1:" nt",2:" sc1",3:" sc0 sc1",4:" sc0 sc1 nt",5:" sc1 nt"}
for a in sys.argv[1:]:
    k, v = a.split("="); opt[k] = int(v)
import asmgen
asmgen.TC[0] = opt["tc"]; asmgen.TC[1] = opt["strict"]
V = lambda lo, n=1: Reg("v", lo, n)
A_ = lambda lo, n=1: Reg("a", lo, n)
S = lambda lo, n=1: Reg("s", lo, n)
def P(i, pr=(), pw=(), **kw):
    i.x["pr"] = list(i.x.get("pr", [])) + list(pr); i.x["pw"] = list(i.x.get("pw", [])) + list(pw); i.x.update(kw); return i
VMO = ["#VM"]
def vm(i, **kw): return P(i, pr=VMO, pw=VMO, **kw)
SRD_X, SRD_W, SRD_O, SRD_N, SRD_WO, SRD_D = S(16,4), S(20,4), S(24,4), S(28,4), S(32,4), S(36,4)
def srd(d, p, nbytes):
    return [salu(f"s_mov_b32 s{d.lo}, s{p}", [f"s{p}"], [f"s{d.lo}"]),
            salu(f"s_and_b32 s{d.lo+1}, s{p+1}, 0xffff", [f"s{p+1}"], [f"s{d.lo+1}", "scc"]),
            salu(f"s_mov_b32 s{d.lo+2}, {nbytes}", [], [f"s{d.lo+2}"]),
            salu(f"s_mov_b32 s{d.lo+3}, 0x20000", [], [f"s{d.lo+3}"])]
NOFF = 73728
MOFF = 81920
vLANE = V(1); vXO = [V(2+t) for t in range(4)]; vSO3 = V(6); vL16 = V(7)
vNR = [V(8), V(9), V(10)]; vND = V(11); vNINF = V(15)
TMP = lambda tq, k: V(16 + (tq & 1)*4 + k)
WB3 = lambda s: A_(144 + s*4, 4)
TF3 = lambda v: A_(168 + v*4, 4)
vM3, vE, vR8 = V(25), V(26), V(27)
T3B, U3D = 73728, 81920
SA = lambda tk, tq: V(32 + (tk*4+tq)*4, 4)
ACC = lambda b, t: V(96 + b*16 + t*4, 4)
TF = lambda v, t: V(128 + (v & 1)*16 + t*4, 4)
PF = lambda tq, ks: V(160 + (tq*2+ks)*4, 4)
def UF(tau, ks):
    base = 192 + tau*8 if tau < 8 else 128 + (tau-8)*8
    return V(base + ks*4, 4)
X = lambda t, s: A_(t*24 + s*4, 4)
WB = lambda b, s: A_(96 + b*24 + s*4, 4)
sWAVE, sC, sMASK, sW6 = "s40", "s42", S(44, 2), "s49"
sCNT, sJOB, sLIM, sMODE, sFLAG = "s73", "s74", "s75", "s77", "s78"

SCR = 147456
pAf = [[A_(144 + (b*6+ks)*4, 4) for ks in range(6)] for b in range(2)]
pBf = [[V(176 + (a*6+ks)*4, 4) for ks in range(6)] for a in range(2)]
pD = [[V(224 + (a*2+b)*4, 4) for b in range(2)] for a in range(2)]
pO = [V(240 + a*4, 4) for a in range(2)]
sPV, sPS = "s54", "s55"
def scr_off(fb, n): return (n*1024 if n < 10 else 43008 + (n-10)*1024) if fb else n*1024
def prod_issue(fb=0):
    SB = 0 if fb else SCR
    o = []
    sv, st, t0, t1 = sPV, sPS, "s52", "s53"
    o.append(salu(f"s_mul_i32 {sv}, {sJOB}, 43", [sJOB], [sv]))
    o.append(salu(f"s_lshr_b32 {sv}, {sv}, 8", [sv], [sv, "scc"]))
    o.append(salu(f"s_mul_i32 {t0}, {sv}, 6", [sv], [t0]))
    o.append(salu(f"s_sub_u32 {st}, {sJOB}, {t0}", [sJOB, t0], [st, "scc"]))
    vi, vg, va, vb, vt = (V(16+k) for k in range(5))
    o.append(valu("v_and_b32", vi, 15, vLANE))
    o.append(valu("v_lshrrev_b32", vg, 4, vLANE))
    o.append(valu("v_lshrrev_b32", vt, 2, vi))
    o.append(valu("v_and_b32", vb, 3, vi))
    o.append(valu("v_lshl_add_u32", va, vt, 3, vb))
    o.append(valu("v_mul_u32_u24", va, 1152, va))
    o.append(valu("v_lshl_add_u32", va, vg, 4, va))
    o.append(salu(f"s_mul_i32 {t0}, {st}, {32*1152}", [st], [t0]))
    o.append(valu("v_add_u32", va, t0, va))
    o.append(valu("v_lshl_add_u32", V(21), vg, 3, vt))
    o.append(valu("v_lshlrev_b32", V(21), 6, V(21)))
    o.append(valu("v_lshl_add_u32", V(21), vb, 4, V(21)))
    o.append(valu("v_add_u32", V(21), SB, V(21)))
    o.append(valu("v_lshrrev_b32", vt, 2, vLANE))
    o.append(valu("v_mul_u32_u24", vt, 384, vt))
    o.append(valu("v_and_b32", vb, 3, vLANE))
    o.append(valu("v_lshl_add_u32", vb, vb, 4, vt))
    o.append(salu(f"s_lshl_b32 {t0}, {sv}, 6", [sv], [t0, "scc"]))
    o.append(valu("v_add_u32", vb, t0, vb))
    o.append(salu(f"s_movk_i32 {t1}, {4*1152}", [], [t1]))
    for n in range(12):
        o.append(salu(f"s_mov_b32 {t0}, {n*16*384}", [], [t0]))
        o.append(salu(f"s_mov_b32 m0, {SB + scr_off(fb, n)}", [], ["m0"]))
        o.append(vm(dma(vb, SRD_WO, t0)))
    for ks in range(6):
        for b in range(2): o.append(vm(bload("buffer_load_dwordx4", pAf[b][ks], va, SRD_W, t1 if b else 0, 768 + 64*ks)))
    return o
def mprod():
    o = []
    sv, st, t0, t1 = sPV, sPS, "s52", "s53"
    o.append(salu(f"s_mul_i32 {sv}, {sJOB}, 43", [sJOB], [sv]))
    o.append(salu(f"s_lshr_b32 {sv}, {sv}, 8", [sv], [sv, "scc"]))
    o.append(salu(f"s_mul_i32 {t0}, {sv}, 6", [sv], [t0]))
    o.append(salu(f"s_sub_u32 {st}, {sJOB}, {t0}", [sJOB, t0], [st, "scc"]))
    vi, vg, va, vb, vt = (V(16+k) for k in range(5))
    o.append(valu("v_and_b32", vi, 15, vLANE))
    o.append(valu("v_lshrrev_b32", vg, 4, vLANE))
    o.append(valu("v_lshrrev_b32", vt, 2, vi))
    o.append(valu("v_and_b32", vb, 3, vi))
    o.append(valu("v_lshl_add_u32", va, vt, 3, vb))
    o.append(valu("v_mul_u32_u24", va, 1152, va))
    o.append(valu("v_lshl_add_u32", va, vg, 4, va))
    o.append(salu(f"s_mul_i32 {t0}, {sv}, {32*1152}", [sv], [t0]))
    o.append(valu("v_add_u32", vb, t0, va))
    o.append(salu(f"s_mul_i32 {t0}, {st}, {32*1152}", [st], [t0]))
    o.append(valu("v_add_u32", va, t0, va))
    o.append(salu(f"s_movk_i32 {t1}, {4*1152}", [], [t1]))
    for ks in range(6):
        for b in range(2):
            o.append(vm(bload("buffer_load_dwordx4", pAf[b][ks], va, SRD_W, t1 if b else 0, 64*ks)))
            o.append(vm(bload("buffer_load_dwordx4", pBf[b][ks], vb, SRD_W, t1 if b else 0, 384 + 64*ks)))
    o.append(wait(vm=0))
    return o + prod_compute(0, 1)
def prod_compute(fb=0, isM=0):
    o = []
    sv, st, t0, t1 = sPV, sPS, "s52", "s53"
    for ks in range(6 if not isM else 0):
        for a in range(2):
            for h in range(2):
                o.append(ds_read("ds_read_b64_tr_b16", pBf[a][ks].sub(2*h, 2), V(21), scr_off(fb, 2*ks) + h*256 + 8*a))
    for ks in range(6):
        for a in range(2):
            for b in range(2):
                o.append(mfma(pD[a][b], pAf[b][ks], pBf[a][ks], None if ks == 0 else pD[a][b]))
    o.append(salu(f"s_mul_i32 {t0}, {sv}, 12288", [sv], [t0]))
    o.append(salu(f"s_lshl_b32 {t1}, {st}, 10", [st], [t1, "scc"]))
    o.append(salu(f"s_add_u32 {t0}, {t0}, {t1}", [t0, t1], [t0, "scc"]))
    if isM: o.append(salu(f"s_add_u32 {t0}, {t0}, {NOFF}", [t0], [t0, "scc"]))
    o.append(salu(f"s_add_u32 {t1}, {t0}, 6144", [t0], [t1, "scc"]))
    for a in range(2):
        for b in range(2):
            o.append(cvtpk(pO[a][2*b], pD[a][b][0], pD[a][b][1])); o.append(cvtpk(pO[a][2*b+1], pD[a][b][2], pD[a][b][3]))
        o.append(vm(bstore("buffer_store_dwordx4", pO[a], vL16, SRD_N, t1 if a else t0, 0, " sc1")))
    o.append(raw("s_nop 1"))
    return o
vPA, vPQ = V(22), V(23)
def slow_path():
    o = [label("L_slowN"), salu(f"s_movk_i32 {sCNT}, {opt['tmo']}", [], [sCNT]), label("L_pollN")]
    o.append(raw("s_sleep 4"))
    o.append(raw(f"buffer_load_dword {vPQ}, {vPA}, {SRD_D}, 0 offen offset:132 sc1", regs_of(vPA, SRD_D), regs_of(vPQ), "vload_untracked"))
    o.append(raw("s_waitcnt vmcnt(0)"))
    o.append(valu("v_cmp_ne_u32", "vcc", 0x01010101, vPQ))
    o.append(salu("s_cmp_eq_u64 vcc, 0", ["vcc"], ["scc"]))
    o.append(raw("s_cbranch_scc1 L_okN", ["scc"]))
    o.append(salu(f"s_sub_u32 {sCNT}, {sCNT}, 1", [sCNT], [sCNT, "scc"]))
    o.append(raw("s_cbranch_scc0 L_pollN", ["scc"]))
    o.append(salu(f"s_mov_b32 {sJOB}, 0", [], [sJOB]))
    o.append(label("L_fb"))
    o += prod_issue(1) + [wait(vm=0)] + prod_compute(1)
    o.append(salu(f"s_add_u32 {sJOB}, {sJOB}, 1", [sJOB], [sJOB, "scc"]))
    o.append(salu(f"s_cmp_lt_u32 {sJOB}, 36", [sJOB], ["scc"]))
    o.append(raw("s_cbranch_scc1 L_fb", ["scc"]))
    o.append(wait(vm=0))
    o.append(raw("s_branch L_okN"))
    o += [label("L_slowM"), salu(f"s_movk_i32 {sCNT}, {opt['tmo']}", [], [sCNT]), label("L_pollM")]
    o.append(raw(f"s_sleep {opt['bo']}"))
    o.append(raw(f"buffer_load_dword {vPQ}, off, {SRD_D}, 0 offset:128 sc1", regs_of(vPA, SRD_D), regs_of(vPQ), "vload_untracked"))
    o.append(raw("s_waitcnt vmcnt(0)"))
    o.append(valu("v_cmp_ne_u32", "vcc", 0x01010101, vPQ))
    o.append(salu("s_cmp_eq_u64 vcc, 0", ["vcc"], ["scc"]))
    o.append(raw("s_cbranch_scc1 L_okM", ["scc"]))
    o.append(salu(f"s_sub_u32 {sCNT}, {sCNT}, 1", [sCNT], [sCNT, "scc"]))
    o.append(raw("s_cbranch_scc0 L_pollM", ["scc"]))
    o.append(salu(f"s_mov_b32 {sJOB}, 0", [], [sJOB]))
    o.append(label("L_fbM"))
    o += mprod()
    o.append(salu(f"s_add_u32 {sJOB}, {sJOB}, 1", [sJOB], [sJOB, "scc"]))
    o.append(salu(f"s_cmp_lt_u32 {sJOB}, 36", [sJOB], ["scc"]))
    o.append(raw("s_cbranch_scc1 L_fbM", ["scc"]))
    o.append(wait(vm=0))
    o.append(raw("s_branch L_okM"))
    return finish(o)[0]

def stamp(k):
    return [P(raw(f"s_memtime s[{84+2*k}:{85+2*k}]", [], [], "smem"), pr=["#LDS"], pw=["#LDS"])] if opt["stamps"] else []

def main_kernel():
    pre = []
    if opt["stamps"]: pre.append(raw("s_memrealtime s[80:81]")); pre.append(raw("s_memtime s[84:85]")); pre.append(raw("s_memtime s[94:95]"))
    pre.append(raw("s_load_dwordx8 s[4:11], s[0:1], 0", ["s0","s1"], R("s",4,8), "smem"))
    pre.append(raw("s_load_dwordx4 s[12:15], s[0:1], 32", ["s0","s1"], R("s",12,4), "smem"))
    pre.append(salu("s_cmp_ge_u32 s2, 256", ["s2"], ["scc"]))
    pre.append(raw("s_cbranch_scc1 L_end", ["scc"]))
    t0, t1, t2, t3 = V(12), V(13), V(14), V(15)
    if opt["pf"]:
        pre.append(raw("s_getpc_b64 s[74:75]", [], ["s74", "s75"]))
        pre.append(salu("s_lshr_b32 s50, s2, 3", ["s2"], ["s50", "scc"]))
        pre.append(salu("s_lshl_b32 s50, s50, 8", ["s50"], ["s50", "scc"]))
        pre.append(valu("v_add_u32", t0, "s50", "v0"))
        pre.append(salu("s_and_b32 s74, s74, 0xffffff00", ["s74"], ["s74", "scc"]))
        pre.append(valu("v_and_b32", t0, 0x7ff, t0))
        pre.append(valu("v_lshlrev_b32", t0, 4, t0))
        pre.append(valu("v_min_u32", t0, f"L_cend-{KN}-16", t0))
        pre.append(raw(f"global_load_dwordx4 v[244:247], {t0}, s[74:75]", ["v12", "s74", "s75"], [], "vload_untracked"))
    pre.append(valu("v_and_b32", vLANE, 63, "v0"))
    pre.append(valu("v_lshrrev_b32", t0, 6, "v0"))
    pre.append(valu("v_readfirstlane_b32", sWAVE, t0, k="rfl"))
    pre.append(valu("v_lshlrev_b32", vL16, 4, vLANE))
    pre.append(salu("s_lshr_b32 s50, s2, 3", ["s2"], ["s50", "scc"]))
    pre.append(salu("s_and_b32 s51, s2, 7", ["s2"], ["s51", "scc"]))
    pre.append(salu("s_lshl_b32 s51, s51, 2", ["s51"], ["s51", "scc"]))
    pre.append(salu(f"s_add_u32 s51, s51, {sWAVE}", ["s51", sWAVE], ["s51", "scc"]))
    pre.append(salu(f"s_mul_i32 s50, s50, {7*224*384}", ["s50"], ["s50"]))
    pre.append(salu(f"s_mul_i32 s51, s51, {7*384}", ["s51"], ["s51"]))
    pre.append(salu("s_add_u32 s50, s50, s51", ["s50", "s51"], ["s50", "scc"]))
    pre.append(salu("s_mov_b32 s47, s50", ["s50"], ["s47"]))
    pre.append(valu("v_and_b32", t0, 15, vLANE))
    pre.append(valu("v_lshrrev_b32", t1, 4, vLANE))
    pre.append(valu("v_lshlrev_b32", t2, 4, t1))
    pre.append(valu("v_add_u32", t2, "s50", t2))
    for t in range(3):
        pre.append(valu("v_add_u32", t3, 16*t, t0))
        pre.append(valu("v_mul_u32_u24", vXO[t], 37, t3))
        pre.append(valu("v_lshrrev_b32", vXO[t], 8, vXO[t]))
        pre.append(valu("v_mul_u32_u24", vXO[t], 217, vXO[t]))
        pre.append(valu("v_add_u32", vXO[t], vXO[t], t3))
        pre.append(valu("v_mul_u32_u24", vXO[t], 384, vXO[t]))
        pre.append(valu("v_add_u32", vXO[t], vXO[t], t2))
    pre.append(valu("v_add_u32", vXO[3], (6*224+6)*384, t2))
    pre.append(salu(f"s_lshl_b32 {sJOB}, {sWAVE}, 8", [sWAVE], [sJOB, "scc"]))
    pre.append(salu(f"s_add_u32 {sJOB}, {sJOB}, s2", [sJOB, "s2"], [sJOB, "scc"]))
    pre.append(salu(f"s_mul_i32 {sW6}, {sWAVE}, 6144", [sWAVE], [sW6]))
    pre.append(wait(lgkm=0))
    pre += srd(SRD_W, 6, 192*576*2) + srd(SRD_X, 4, XBYTES) + srd(SRD_N, 14, 0x200000 if opt["stamps"] else 2*NOFF) + srd(SRD_WO, 8, 192*192*2) + srd(SRD_D, 12, 256)
    pre = finish(pre)[0]
    stp = "s_memtime s[94:95]\n    " if opt["stamps"] else ""
    flx = lambda off: f"buffer_store_byte v16, v17, {SRD_D}, {sJOB} offen offset:{off} sc1\n    "
    fin = lambda off, no: f"s_waitcnt vmcnt(0)\n    v_mov_b32 v16, 1\n    v_mov_b32 v17, 0\n    s_mov_b64 exec, 1\n    {'' if no else flx(off)}{stp}s_mov_b64 exec, -1\n"
    finM = (f"s_waitcnt vmcnt(0)\n    v_mov_b32 v16, 1\n    s_mov_b64 exec, 1\n    buffer_atomic_add v16, off, {SRD_D}, 0 offset:64 sc0 sc1\n    {'s_barrier' if opt['ab'] else 's_nop 0'}\n    s_waitcnt vmcnt(0)\n"
            f"    v_readfirstlane_b32 s52, v16\n    v_mov_b32 v16, 0x01010101\n    s_cmp_lg_u32 s52, {35 + 100*opt['noflm']}\n    s_cbranch_scc1 L_nl\n"
            f"    buffer_store_dword v16, off, {SRD_D}, 0 offset:128 sc1\nL_nl:\n    {stp}s_mov_b64 exec, -1\n")
    pre.append(raw(f"s_mov_b32 {sMODE}, 0\n    s_cmp_ge_u32 {sJOB}, 72\n    s_cbranch_scc1 L_np1\n    s_setprio 3\n    s_mov_b32 {sMODE}, 1\n    s_cmp_ge_u32 {sJOB}, 36\n    s_cbranch_scc1 L_pn\n    "
        + text(finish(mprod())[0]).strip() + "\n    " + finM + f"    s_setprio 0\n    s_branch L_np1\nL_pn:\n    s_sub_u32 {sJOB}, {sJOB}, 36\n    s_mov_b32 {sMODE}, {1 if opt['nq'] else 2}\n    "
        + (text(finish(prod_issue() + [wait(vm=0)] + prod_compute())[0]).strip() + "\n    " + finM.replace("offset:64", "offset:0").replace("offset:128", "offset:132").replace("L_nl", "L_nl2").replace(f"s52, {35 + 100*opt['noflm']}", f"s52, {35 + 100*opt['nofl']}") + "    s_setprio 0" if opt['nq'] else text(finish(prod_issue())[0]).strip()) + "\nL_np1:", [], []))
    q = []
    def wpiece(kk, m, j):
        imm = m*384 + kk*128
        return [salu(f"s_add_u32 m0, {sL[j]}, {kk*49152 + m*24576 - imm}", [sL[j]], ["m0", "scc"]),
                vm(dma(vWA, SRD_W, sJ[j], f" offset:{imm}"), tag=f"W{kk}")]
    xl = []
    vXR = [[V(248+2*t+h) for h in range(2)] for t in range(4)]
    sXA, sXBb = "s68", "s69"
    xcnt = [0]
    RAW = lambda r, j: A_(48 + ((r-4)*3 + j)*4, 4)
    def xsetup(B):
        vXC = [V(B+j) for j in range(3)]; vXB = V(B+3); vL7 = V(B+4); u0, u1 = V(B+5), V(B+6)
        o = [valu("v_lshrrev_b32", u0, 3, vLANE), valu("v_lshlrev_b32", vXB, 7, u0), valu("v_add_u32", vXB, "s47", vXB), valu("v_and_b32", vL7, 7, vLANE)]
        for j in range(3):
            o += [valu("v_add_u32", u1, 8*j, u0), valu("v_mul_u32_u24", u1, 43, u1), valu("v_lshrrev_b32", vXC[j], 7, u1)]
        return o
    def xmask(d):
        d.t = "s_mov_b64 exec, s[70:71]\n    " + d.t + "\n    s_mov_b64 exec, -1"; d.rd |= {"s70", "s71"}; return d
    def xdma(r, B=200, reg=0):
        vXC = [V(B+j) for j in range(3)]; vXB = V(B+3); vL7 = V(B+4); vXT = [V(B+5), V(B+6), V(B+7)]
        o = []
        o.append(salu(f"s_mov_b32 s50, {r*86016}", [], ["s50"]))
        if not reg: o.append(salu(f"s_add_u32 m0, {sXA if r < 4 else sXBb}, {(r if r < 4 else r-4)*2688}", [sXA, sXBb], ["m0", "scc"]))
        for j in range(3):
            t = vXT[xcnt[0] % 3]; xcnt[0] += 1
            o.append(valu("v_add_u32", t, 7*r, vXC[j]))
            o.append(valu("v_bfe_u32", t, t, 1, 3))
            o.append(valu("v_xor_b32", t, t, vL7))
            o.append(valu("v_lshl_add_u32", t, t, 4, vXB))
            if reg: d = vm(bload("buffer_load_dwordx4", RAW(r, j), t, SRD_X, "s50", j*1024, FLG[opt["xfl"]]))
            else: d = vm(dma(t, SRD_X, "s50", f" offset:{j*1024}" + FLG[opt["xfl"]]), tag=f"XR{r}")
            o.append(xmask(d) if j == 2 else d)
        return o
    def wmix(kk, nx):
        o = []; ws = [wpiece(kk, m, j) for m in range(2) for j in range(6)]
        done = 0
        for n, w in enumerate(ws):
            o += w
            want = (nx * (n+1) // 12) // 2 * 2
            while done < want: o.append(xl.pop(0)); done += 1
        return o
    XS = (0, 0, 0)
    q.append(salu("s_mov_b32 s70, -1", [], ["s70"])); q.append(salu("s_movk_i32 s71, 0xff", [], ["s71"]))
    q += xsetup(200)
    q.append(salu(f"s_mul_i32 {sXA}, {sWAVE}, 10752", [sWAVE], [sXA]))
    q.append(salu(f"s_lshl_b32 {sXBb}, {sWAVE}, 13", [sWAVE], [sXBb, "scc"]))
    q.append(salu(f"s_add_u32 {sXBb}, {sXBb}, 49152", [sXBb], [sXBb, "scc"]))
    rows = lambda rs: text(finish([i for r in rs for i in xdma(r)])[0]).strip()
    pe = opt["pearly"]
    slp = f"s_cmp_eq_u32 {sMODE}, 2\n    s_cbranch_scc1 L_x1\n    s_sleep {opt['hs']}\nL_x1:\n    " if opt["hs"] else ""
    tx = f"s_cmp_eq_u32 {sMODE}, 1\n    s_cbranch_scc1 L_pw\n    " + slp + rows(range(pe)) + f"\n    s_cmp_ge_u32 s2, {72 if opt['nq'] else 36}\n    s_cbranch_scc1 L_x2\n    s_barrier\n    s_branch L_x2\nL_pw:\n    " + ("" if opt["ab"] else "s_barrier\n    ")
    ncmp = f"\n    s_cmp_lg_u32 {sMODE}, 2\n    s_cbranch_scc1 L_x3\n    s_waitcnt vmcnt({3*pe if opt['nsp'] else 21})\n    s_nop 4\n    " + text(finish(prod_compute() + (xsetup(200) if opt['nsp'] else []))[0]).strip() + "\n    s_setprio 0\n    s_nop 4\nL_x3:\n    "
    tx += rows(range(pe)) + "\nL_x2:\n    " + (ncmp if opt['nsp'] else "") + rows(range(pe, 7)) + ("" if opt['nsp'] else ncmp)
    q.append(raw("s_nop 4\n    " + tx, [], []))
    q += srd(SRD_O, 10, XBYTES)
    q.append(salu(f"s_lshl_b32 s52, {sWAVE}, 2", [sWAVE], ["s52", "scc"]))
    q.append(valu("v_cmp_eq_u32", "vcc", "s52", t0))
    q.append(valu("v_mov_b32", vSO3, 0x7f000000))
    q.append(valu("v_cndmask_b32", vSO3, vSO3, vXO[3], "vcc"))
    q.append(valu("v_mov_b32", vNR[0], vL16))
    q.append(valu("v_add_u32", vNR[1], 49152, vL16))
    q.append(valu("v_add_u32", vNR[2], 98304, vL16))
    q.append(valu("v_add_u32", vND, sW6, vL16))
    q.append(valu("v_mov_b32", vPA, 0))
    q.append(valu("v_mov_b32", vNINF, 0xff800000))

    c = 192 ** -0.5 * math.log2(math.e)
    q.append(salu(f"s_mov_b32 {sC}, 0x{struct.unpack('<I', struct.pack('<f', c))[0]:08x}", [], [sC]))
    q.append(salu(f"s_mov_b32 s43, {sC}", [sC], ["s43"]))
    q.append(salu(f"s_mov_b64 {sMASK}, 0xffff", [], sMASK.regs()))
    q.append(salu(f"s_lshl_b32 s52, {sWAVE}, 4", [sWAVE], ["s52", "scc"]))
    q.append(salu(f"s_lshl_b64 {sMASK}, {sMASK}, s52", sMASK.regs() + ["s52"], sMASK.regs() + ["scc"]))
    q += stamp(1)
    u0, u1 = V(205), V(206)
    q.append(valu("v_add_u32", V(31), sXBb, vL16))
    q.append(salu(f"s_sub_u32 s52, {sXBb}, 10752", [sXBb], ["s52", "scc"]))
    q.append(valu("v_lshrrev_b32", u0, 1, t0))
    q.append(valu("v_xor_b32", u0, u0, t1))
    q.append(valu("v_lshlrev_b32", u0, 4, u0))
    q.append(valu("v_mul_u32_u24", u1, 384, t0))
    q.append(valu("v_add_u32", u0, u0, u1))
    q.append(valu("v_add_u32", vXR[0][0], sXA, u0))
    q.append(valu("v_add_u32", vXR[2][0], "s52", u0))
    q.append(valu("v_cmp_gt_u32", "vcc", 12, t0))
    q.append(valu("v_cndmask_b32", vXR[1][0], vXR[2][0], vXR[0][0], "vcc"))
    q.append(valu("v_add_u32", vXR[1][0], 16*384, vXR[1][0]))
    q.append(valu("v_add_u32", vXR[2][0], 32*384, vXR[2][0]))
    q.append(valu("v_lshlrev_b32", u1, 4, t1))
    q.append(valu("v_lshrrev_b32", u0, 2, t0))
    q.append(valu("v_lshl_add_u32", u1, u0, 13, u1))
    q.append(valu("v_add_u32", vXR[3][0], 49152 + 20*384, u1))
    q.append(valu("v_add_u32", vM3, MOFF, vND))
    for t in range(4): q.append(valu("v_xor_b32", vXR[t][1], 64, vXR[t][0]))

    p = []
    def sync(tag, rdregs, after=(), lg=None):
        w = I("WAIT", rdregs, [], "wait", {"tag": tag, "lgkm": lg, "vm": None})
        p.append(P(w, pr=["#LDS", "#VM"] + list(after), pw=["#LDS", "#VM"], fence=1))
        p.append(P(barrier(), pr=["#LDS"], pw=["#LDS"], fence=1))
    def wdma(base, part, tag, out):
        for half in range(2):
            off = part*24576 + half*4096
            out.append(salu(f"s_mov_b32 s50, {off + (NOFF if base else 0)}", [], ["s50"]))
            out.append(salu(f"s_add_u32 m0, {sW6}, {off + base}", [sW6], ["m0", "scc"]))
            for jj in range(4 if half == 0 else 2):
                out.append(vm(dma(vND, SRD_N, "s50", f" offset:{jj*1024}" + FLG[opt["mml" if base else "mfl"]]), tag=tag))
    def reads(n):
        for s in range(6):
            off = MOFF + (n*6 + s)*1024 if n < 12 else ((n-12)*6 + s)*1024
            bi = min(off // 49152, 2)
            p.append(P(ds_read("ds_read_b128", WB(n & 1, s), vNR[bi], off - bi*49152), pr=["#LDS"]))
    AC3 = lambda k: ACC(k & 1, 3)
    T3T = {opt["t3a"] + opt["t3s"]*k: k for k in range(3)}
    NB = opt["nb"]
    U3T = {NB + 1 + k: k for k in range(3)}
    assert NB + 3 <= 10 and max(T3T) < NB
    def reads3(k, isN):
        for s in range(6):
            p.append(P(ds_read("ds_read_b128", WB3(s), vND if isN else vM3, k*24576 + s*1024), pr=["#LDS"]))
    def out3(k):
        c = AC3(k)
        p.append(cvtpk(c[0], c[0], c[1])); p.append(cvtpk(c[1], c[2], c[3]))
        p.append(P(ds_write("ds_write_b64", vE, c.sub(0, 2), k*2048), pr=["#LDS"], pw=["#E"]))
    def tgroup(tau):
        b = tau & 1
        for s in range(6):
            for t in range(3):
                i = mfma(ACC(b, t), WB(b, s), X(t, s), None if s == 0 else ACC(b, t))
                if s == 3 and t == 0: P(i, pw=[f"#g{tau}"])
                p.append(i)
            if tau in T3T: p.append(mfma(AC3(T3T[tau]), WB3(s), X(3, s), None if s == 0 else AC3(T3T[tau])))
            if tau in U3T: p.append(mfma(AC3(U3T[tau]), X(3, s), WB3(s), None if s == 0 else AC3(U3T[tau])))
    def tcvts(tau):
        a = tau & 1
        for t in range(3):
            d = TF(tau >> 1, t)
            p.append(cvtpk(d[2*a], ACC(a, t)[0], ACC(a, t)[1])); p.append(cvtpk(d[2*a+1], ACC(a, t)[2], ACC(a, t)[3]))
        if tau in T3T: out3(T3T[tau])
        if tau in U3T and tau != 10: out3(U3T[tau])
    def sblock(v):
        for tq in range(3):
            for tk in range(4):
                p.append(mfma(SA(tk, tq), X(tk, v), TF(v, tq), None if v == 0 else SA(tk, tq)))
    def sblock3():
        for v in range(6):
            for tk in range(4):
                p.append(mfma(SA(tk, 3), X(tk, v), TF3(v), None if v == 0 else SA(tk, 3)))
    def ugroup(tau):
        b = tau & 1
        for s in range(6):
            for t in range(3):
                p.append(mfma(ACC(b, t), X(t, s), WB(b, s), None if s == 0 else ACC(b, t)))
    def ucvts(tau):
        b = tau & 1
        for t in range(3):
            d = UF(tau, t >> 1)
            p.append(cvtpk(d[2*(t&1)], ACC(b, t)[0], ACC(b, t)[1])); p.append(cvtpk(d[2*(t&1)+1], ACC(b, t)[2], ACC(b, t)[3]))
    def xlane(op, m, m2):
        for sw in ("v_permlane32_swap_b32", "v_permlane16_swap_b32"):
            p.append(valu("v_mov_b32", m2, m))
            p.append(I(f"{sw} {m}, {m2}", regs_of(m, m2), regs_of(m, m2), "perm"))
            p.append(valu(op, m, m, m2))
    def softmax(tq):
        n0_ = len(p)
        m, m2, s1, s2 = (TMP(tq, k) for k in range(4))
        vals = [SA(tk, tq)[r] for tk in range(3) for r in range(4)] + [SA(3, tq)[0]]
        L = vals[12]
        p.append(valu("v_cndmask_b32", L, vNINF, L, sMASK))
        p.append(valu("v_max3_f32", m, vals[0], vals[1], vals[2]))
        p.append(valu("v_max3_f32", m2, vals[3], vals[4], vals[5]))
        p.append(valu("v_max3_f32", m, m, vals[6], vals[7]))
        p.append(valu("v_max3_f32", m2, m2, vals[8], vals[9]))
        p.append(valu("v_max3_f32", m, m, vals[10], vals[11]))
        p.append(valu("v_max3_f32", m, m, m2, L))
        xlane("v_max_f32", m, m2)
        p.append(valu("v_mul_f32", m, sC, m))
        for k, v in enumerate(vals):
            p.append(valu("v_fma_f32", v, v, sC, "-" + str(m)))
            p.append(valu("v_exp_f32", v, v, k="trans"))
            if k == 3: p.append(valu("v_add_f32", s1, vals[0], vals[1]))
            if k == 4: p.append(valu("v_add_f32", s2, vals[2], vals[3]))
            if k >= 5: p.append(valu("v_add_f32", (s1, s2)[k & 1], (s1, s2)[k & 1], vals[k-1]))
        p.append(valu("v_add_f32", s2, s2, L))
        p.append(valu("v_add_f32", s1, s1, s2))
        xlane("v_add_f32", s1, s2)
        p.append(valu("v_rcp_f32", s1, s1, k="trans"))
        for k in range(6):
            for h in range(2): p.append(valu("v_mul_f32", vals[2*k+h], vals[2*k+h], s1))
            p.append(cvtpk(PF(tq, k >> 2)[k & 3], vals[2*k], vals[2*k+1]))
        p.append(valu("v_mul_f32", L, L, s1))
        p.append(cvtpk(PF(tq, 1)[2], L, 0))
        p.append(valu("v_mov_b32", PF(tq, 1)[3], 0))
        for i in p[n0_:]: i.x["bg"] = 1
    OA = lambda b, a, tq: V(32 + b*32 + (a*4+tq)*4, 4)
    OUT = lambda k: V(16 + (k % 4)*4, 4)
    cnt = [0]
    def omf(v, tq, a):
        for ks in range(2):
            p.append(mfma(OA(v & 1, a, tq), UF(2*v+a, ks), PF(tq, ks), None if ks == 0 else OA(v & 1, a, tq)))
    def ost(v, tq):
        b = v & 1; o = OA(b, 0, tq)
        for a in range(2):
            p.append(cvtpk(o[2*a], OA(b, a, tq)[0], OA(b, a, tq)[1])); p.append(cvtpk(o[2*a+1], OA(b, a, tq)[2], OA(b, a, tq)[3]))
        p.append(vm(bstore("buffer_store_dwordx4", o, vXO[tq] if tq < 3 else vSO3, SRD_O, 0, 64*v, FLG[opt["sfl"]])))
    def ounit(v, tq): omf(v, tq, 0); omf(v, tq, 1); ost(v, tq)
    PRODREGS = R("v", 176, 72) + R("v", 16, 6) + ["v23"] + R("s", 52, 4) + ["vcc", "m0"]
    FA = lambda buf, sp, b: A_(96 + buf*48 + (sp*2+b)*4, 4)
    FB = lambda buf, vp, a: A_(96 + buf*48 + 24 + (vp*2+a)*4, 4)
    MD = lambda vp, a, sp, b: V(32 + (((vp*2+a)*3+sp)*2+b)*4, 4)
    def mreads(ks):
        kk, kh = ks >> 1, ks & 1
        base = 49152 if kk == 1 else 0
        for x in range(3):
            for y in range(2):
                p.append(P(ds_read("ds_read_b128", FA(ks & 1, x, y), vRA[kh], base + x*4096 + y*512), pr=["#LDS"]))
                p.append(P(ds_read("ds_read_b128", FB(ks & 1, x, y), vRB[kh], base + x*4096 + y*512), pr=["#LDS"]))
    def mgroup(ks):
        for vp in range(3):
            for a in range(2):
                for sp in range(3):
                    for b in range(2):
                        p.append(mfma(MD(vp, a, sp, b), FA(ks & 1, sp, b), FB(ks & 1, vp, a), None if ks == 0 else MD(vp, a, sp, b)))
    allF = [r for buf in range(2) for r in A_(96 + buf*48, 48).regs()]
    fl = "" if opt["nofl"] else f"buffer_store_byte v16, v17, {SRD_D}, {sJOB} offen sc1\n    "
    st = "s_memtime s[94:95]\n    " if opt["stamps"] else ""
    flag = P(raw(f"s_cmp_ge_u32 {sJOB}, 36\n    s_cbranch_scc1 L_np3\n    v_mov_b32 v16, 1\n    v_mov_b32 v17, 0\n    s_mov_b64 exec, 1\n    {fl}{st}s_mov_b64 exec, -1\nL_np3:", [sJOB], ["scc", "v16", "v17"]), pr=["#LDS", "#VM"], pw=["#LDS", "#VM"], fence=1)
    def mark(c):
        for k in (6, 7, 8):
            if opt[f"st{k}"] == c: p.extend(stamp(k))
    def xwait(tag): p.append(P(I("WAIT", [], [], "wait", {"tag": tag, "lgkm": None, "vm": None}), pr=["#LDS", "#VM"], pw=["#LDS", "#VM"], fence=1))
    def xreads(ts):
        for s in range(6):
            for t in ts: p.append(P(ds_read("ds_read_b128", X(t, s), vXR[t][s & 1], (s >> 1)*128), pr=["#LDS", "#XW"]))
    def stage(k0, lead, loads):
        n = len(p); mgroup(k0); mgroup(k0+1); g = p[n:]; del p[n:]
        P(g[max(lead, 1)-1], pw=[f"#ld{k0}"])
        p.extend(g)
        for i in loads:
            if i.k in ("dma", "vload"): P(i, pr=[f"#ld{k0}"])
            p.append(i)
    NP = opt["npo"]
    finN = (f"\n    s_cmp_lg_u32 {sMODE}, 2\n    s_cbranch_scc1 L_npA\n    v_mov_b32 v17, 1\n    s_mov_b64 exec, 1\n    buffer_atomic_add v17, off, {SRD_D}, 0 offset:0 sc0 sc1\n    s_waitcnt vmcnt(0)\n"
            f"    v_readfirstlane_b32 s52, v17\n    v_mov_b32 v17, 0x01010101\n    s_cmp_lg_u32 s52, {35 + 100*opt['nofl']}\n    s_cbranch_scc1 L_nf\n"
            f"    buffer_store_dword v17, off, {SRD_D}, 0 offset:132 sc1\nL_nf:\n    {stp}s_mov_b64 exec, -1")
    ld = lambda k: f"buffer_load_dword v{16+k}, off, {SRD_D}, 0 offset:128 sc1\n    "
    p.append(P(raw(f"s_cmp_lg_u32 {sWAVE}, 0\n    s_cbranch_scc1 L_npA\n    s_waitcnt vmcnt(0)\n    " + f"s_sleep {opt['psl']}\n    ".join(ld(k) for k in range(NP)).rstrip() + finN + "\nL_npA:",
                   [sWAVE] + regs_of(vPA), ["scc", "s52"] + R("v", 16, NP+1)), pr=["#LDS", "#VM"], pw=["#LDS", "#VM"], fence=1))
    mark(-1)
    chk = "".join(f"s_waitcnt vmcnt({NP-1-k})\n    v_cmp_ne_u32 vcc, 0x01010101, v{16+k}\n    s_nop 0\n    s_cmp_eq_u64 vcc, 0\n    s_cbranch_scc1 L_okM\n    " for k in range(NP))
    p.append(P(raw(f"s_cmp_lg_u32 {sWAVE}, 0\n    s_cbranch_scc1 L_wx\n    " + chk + "s_branch L_slowM\nL_wx:\n    s_waitcnt vmcnt(0)\nL_okM:", [sWAVE], PRODREGS + ["scc"] + A_(144, 48).regs()), pr=["#LDS", "#VM"], pw=["#LDS", "#VM"], fence=1))
    p.append(P(barrier(), pr=["#LDS"], pw=["#LDS", "#VM"], fence=1))
    mark(-3)
    for part in range(3): wdma(MOFF, part, f"M{part}", p)
    xreads([0, 1, 2, 3])
    sync(f"M{opt['ms']}", [])
    if opt["early"]: p.append(P(vm(bload("buffer_load_dword", vPQ, vPA, SRD_D, 0, 132, " sc1")), pr=["#LDS"]))
    mark(-4)
    p += stamp(2)
    reads(0)
    PT = opt["ptau"]
    assert opt["xe"] and opt["t3a"] > PT
    p.append(valu("v_lshlrev_b32", vR8, 3, vLANE))
    p.append(valu("v_add_u32", vR8, T3B, vR8))
    p.append(salu(f"s_lshl_b32 s50, {sWAVE}, 9", [sWAVE], ["s50", "scc"]))
    p.append(valu("v_add_u32", vE, "s50", vR8))
    for tau in range(12):
        last = tau == 11
        reads(tau+1)
        if tau in T3T: reads3(T3T[tau], 0)
        if tau in U3T: reads3(U3T[tau], 1)
        if tau == 11 and 10 in U3T: out3(U3T[10])
        gm = len(p); tgroup(tau); g = p[gm:]; del p[gm:]
        if tau == PT - 1 and not opt["early"]:
            p.append(P(vm(bload("buffer_load_dword", vPQ, vPA, SRD_D, 0, 132, " sc1")), pr=[f"#g{tau-1}"]))
        if tau == PT or last or tau == NB:
            p.extend(g[:10])
            if tau == PT:
                p.append(P(valu("v_cmp_ne_u32", "vcc", 0x01010101, vPQ), pr=[f"#g{tau}"], fence=1))
                p.append(P(salu("s_cmp_eq_u64 vcc, 0", ["vcc"], ["scc"]), fence=1))
                p.append(P(salu(f"s_cselect_b32 s52, 1, {sWAVE}", ["scc", sWAVE], ["s52"]), fence=1))
                p.append(P(salu("s_cmp_eq_u32 s52, 0", ["s52"], ["scc"]), fence=1))
                p.append(P(raw("s_cbranch_scc1 L_slowN\nL_okN:", ["scc"], PRODREGS), pr=["#LDS", "#VM"], pw=["#LDS", "#VM"], fence=1))
                sync("M2", [])
                nb = len(p)
                for part in range(3): wdma(0, part, "N", p)
                for i in p[nb:]: i.x["bg"] = 1
            elif tau == NB:
                sync("N", [], after=[f"#g{tau}", "#E"], lg=0)
                for v in range(6):
                    p.append(P(I(f"ds_read2st64_b64 {TF3(v)}, {vR8} offset0:{2*v} offset1:{2*v+1}", regs_of(vR8), regs_of(TF3(v)), "ds_read"), pr=["#LDS"]))
                p.append(valu("v_add_u32", vE, U3D, vE)); p.append(valu("v_add_u32", vR8, U3D, vR8))
            else:
                sync("none", [], after=[f"#g{tau}", "#E"], lg=0)
                p += stamp(3)
                for t2_ in range(8): p.append(P(ds_read("ds_read_b64", UF(t2_, 1).sub(2, 2), vR8, t2_*512), pr=["#LDS"], bg=1))
            p.extend(g[10:])
        else: p.extend(g)
        if tau > 0: tcvts(tau-1)
        if tau >= 2 and tau % 2 == 0: sblock(tau//2 - 1)
        if tau == NB: sblock3(); softmax(3)
    n1 = len([i for i in p if i.k == "mfma"])
    reads(13); ugroup(0); tcvts(11); sblock(5)
    ucvts(0)
    for t2_ in range(8, 12): p.append(P(ds_read("ds_read_b64", UF(t2_, 1).sub(2, 2), vR8, t2_*512), pr=["#LDS"]))
    SEQ = {
     1: {3: "00", 4: "10", 6: "20 01 11", 7: "21", 8: "30 31", 9: "02 12 22", 10: "32 40 41 42", 11: "03 13 23 33 43"},
     2: {3: "00", 4: "10", 5: "01", 6: "11 20 21", 8: "30 31 02 12", 9: "22 32", 10: "40 41 42 03 13", 11: "23 33 43"},
     3: {4: "00 10", 6: "20 01 11", 7: "21", 8: "30 31", 9: "02 12 22 32", 10: "40 41 42", 11: "03 13 23 33 43"},
     4: {4: "00 10", 6: "20", 7: "01 11 21", 8: "30 31", 10: "02 12 22 32 40 41 42", 11: "03 13 23 33 43"},
     5: {3: "00", 4: "10", 6: "20", 7: "01 11 21", 8: "30 31", 10: "40 41 02 12", 11: "22 32 42 50 51 52 03 13 23 33 43 53"},
     6: {4: "00 10", 6: "20", 7: "01 11 21", 8: "30 31", 10: "40 41 02 12 22", 11: "32 42 50 51 52 03 13 23 33 43 53"},
     7: {3: "00", 4: "10", 6: "20 01", 7: "11 21", 8: "30 31", 9: "02", 10: "40 41 12 22", 11: "32 42 50 51 52 03 13 23 33 43 53"},
     8: {3: "00", 4: "10", 6: "20", 7: "01 11", 8: "21 30", 9: "31", 10: "40 41", 11: "02 12 22 32 42 50 51 52 03 13 23 33 43 53"},
     9: {2: "03", 3: "00", 4: "10 13", 6: "20 23 01", 7: "11 21", 8: "30 31 33", 9: "02", 10: "12 22 32 40 41 42 43", 11: "50 51 52 53"},
     10: {2: "03", 4: "00 10 13", 6: "20 23", 7: "01 11 21", 8: "30 31 33", 10: "40 41 43 02 12 22", 11: "32 42 50 51 52 53"},
     11: {2: "03", 3: "00", 4: "10 13", 6: "20 23 01 11", 7: "21", 8: "30 31 33 02", 9: "12 22 32", 10: "40 41 42 43", 11: "50 51 52 53"},
     12: {2: "03", 4: "13 00 10", 6: "23 20", 7: "01 11 21", 8: "33 30 31", 9: "02 12", 10: "43 40 41 22 32 42", 11: "53 50 51 52"},
     13: {2: "03", 4: "13", 5: "00 10", 6: "20 23", 8: "30 33 01 11", 9: "21 31", 10: "40 43 41", 11: "50 53 51 02 12 22 32 42 52"},
     14: {2: "03", 4: "13 00", 5: "10", 6: "20 23", 7: "01", 8: "30 33 11 21", 9: "31", 10: "40 43 41 02", 11: "12 22 50 53 51 32 42 52"},
     15: {2: "03", 4: "13 00 10", 6: "20 23", 7: "01 11", 8: "21 30 33 31", 10: "40 43 41 02 12", 11: "22 32 50 53 51 42 52"},
     16: {2: "03", 4: "13 00 10", 6: "20 23", 7: "01 11 21", 8: "30 33 31", 10: "40 43 41 02 12 22 32", 11: "42 50 53 51 52"},
    }[opt["seq"]]
    for tq in range(3): softmax(tq)
    for tau in range(1, 12):
        if tau + 1 < 12: reads(12+tau+1)
        for k in (6, 7, 8):
            if tau == opt[f"st{k}"]: p.extend(stamp(k))
        if tau == opt["wb"]:
            p.append(P(raw(f"s_cmp_ge_u32 {sJOB}, {opt['wbn']}\n    s_cbranch_scc1 L_nwb\n    buffer_wbl2 sc1\nL_nwb:", [sJOB], ["scc"]), pr=["#VM"], pw=["#VM"]))
        ugroup(tau)
        ucvts(tau)
        for e in SEQ.get(tau, "").split(): ounit(int(e[0]), int(e[1]))
    if opt["seq"] < 5:
        for tq in range(4): omf(5, tq, 0)
        for tq in range(4): omf(5, tq, 1); ost(5, tq)
    n2 = n1 + 24 + 16 + 24*8 + 40
    mf = [i for i in p if i.k == "mfma"]
    mi = {id(i): n for n, i in enumerate(mf)}
    def perfn(j):
        n = mi[id(p[j])]
        return opt["per1"] if n < n1 + 40 else (opt["persm"] if n < n2 else opt["per2"])
    body, t = schedule(p, look=32, perfn=perfn)
    post = []
    if opt["stamps"]:
        post.append(raw("s_memtime s[92:93]")); post.append(raw("s_memrealtime s[82:83]"))
        post.append(wait(lgkm=0))
        post.append(salu("s_lshl_b32 s50, s2, 2")); post.append(salu(f"s_add_u32 s50, s50, {sWAVE}")); post.append(salu("s_lshl_b32 s50, s50, 6")); post.append(salu("s_add_u32 s50, s50, 0x100000"))
        for k, (a, b) in enumerate([("s80", None), ("s81", None), ("s82", None), ("s94", "s84"), ("s86", "s84"), ("s88", "s84"), ("s90", "s84"), ("s92", "s84"), ("s96", "s84"), ("s98", "s84"), ("s100", "s84"), ("s100", None)]):
            if b: post.append(salu(f"s_sub_u32 {a}, {a}, {b}"))
            post.append(valu("v_mov_b32", V(96+k), a))
        post.append(valu("v_mov_b32", V(108), 0))
        post.append(salu("s_mov_b64 exec, 1"))
        for k in range(3): post.append(bstore("buffer_store_dwordx4", V(96+4*k,4), V(108), SRD_N, "s50", 16*k))
    post.append(label("L_end")); post.append(raw("s_endpgm"))
    full, nn = finish(q + body + post)
    tail = slow_path()
    sys.stderr.write(f"main: {len(full)} instrs, mfma {len(mf)}, est cycles {t}, nop states {nn}\n")
    return pre + full + tail

print(f"""; swin window attention: M = Wq*Wk^T and N = Wv*Wo are computed once by 72 producer
; @launch grid=(256,1,1) block=(256,1,1) lds=163840
.amdgcn_target "amdgcn-amd-amdhsa--gfx950"
.text
.globl {KN}
.p2align 8
.type {KN},@function
{KN}:
{text(main_kernel())}
.p2align 6
L_cend:
.section .rodata,"a"
.p2align 6
.amdhsa_kernel {KN}
  .amdhsa_next_free_vgpr 448
  .amdhsa_next_free_sgpr 102
  .amdhsa_accum_offset 256
  .amdhsa_group_segment_fixed_size 0
  .amdhsa_kernarg_size 48
  .amdhsa_user_sgpr_count 2
  .amdhsa_user_sgpr_kernarg_segment_ptr 1
  .amdhsa_system_sgpr_workgroup_id_x 1
.end_amdhsa_kernel""")
```

```python
import sys, math, struct
from asmgen import *
KN = "standalone__swin_window_attn__vision_kernel"
XBYTES = 224*224*192*2
opt = dict(mml=2, psl=8, npo=1, pw=0, bo=2, hs=0, nsp=1, ab=1, nq=1, ms=0, xord=0, pearly=2, noflm=0, per1=2, per2=2, persm=2, stamps=0, xfl=1, sfl=5, pfl=2, mfl=2, tmo=400, nofl=0, ord=0, ptau=2, rot=1, nost=0, tc=8, strict=1, early=1, xe=1, xo=2, ld1=1, ld2=20, ne=2, xw=12, pf=1, t3a=3, t3s=1, nb=7, seq=15, wb=0, wbn=8, st6=5, st7=8, st8=11)
FLG = {0:"",1:" nt",2:" sc1",3:" sc0 sc1",4:" sc0 sc1 nt",5:" sc1 nt"}
for a in sys.argv[1:]:
    k, v = a.split("="); opt[k] = int(v)
import asmgen
asmgen.TC[0] = opt["tc"]; asmgen.TC[1] = opt["strict"]
V = lambda lo, n=1: Reg("v", lo, n)
A_ = lambda lo, n=1: Reg("a", lo, n)
S = lambda lo, n=1: Reg("s", lo, n)
def P(i, pr=(), pw=(), **kw):
    i.x["pr"] = list(i.x.get("pr", [])) + list(pr); i.x["pw"] = list(i.x.get("pw", [])) + list(pw); i.x.update(kw); return i
VMO = ["#VM"]
def vm(i, **kw): return P(i, pr=VMO, pw=VMO, **kw)
SRD_X, SRD_W, SRD_O, SRD_N, SRD_WO, SRD_D = S(16,4), S(20,4), S(24,4), S(28,4), S(32,4), S(36,4)
def srd(d, p, nbytes):
    return [salu(f"s_mov_b32 s{d.lo}, s{p}", [f"s{p}"], [f"s{d.lo}"]),
            salu(f"s_and_b32 s{d.lo+1}, s{p+1}, 0xffff", [f"s{p+1}"], [f"s{d.lo+1}", "scc"]),
            salu(f"s_mov_b32 s{d.lo+2}, {nbytes}", [], [f"s{d.lo+2}"]),
            salu(f"s_mov_b32 s{d.lo+3}, 0x20000", [], [f"s{d.lo+3}"])]
NOFF = 73728
MOFF = 81920
vLANE = V(1); vXO = [V(2+t) for t in range(4)]; vSO3 = V(6); vL16 = V(7)
vNR = [V(8), V(9), V(10)]; vND = V(11); vNINF = V(15)
TMP = lambda tq, k: V(16 + (tq & 1)*4 + k)
WB3 = lambda s: A_(144 + s*4, 4)
TF3 = lambda v: A_(168 + v*4, 4)
vM3, vE, vR8 = V(25), V(26), V(27)
T3B, U3D = 73728, 81920
SA = lambda tk, tq: V(32 + (tk*4+tq)*4, 4)
ACC = lambda b, t: V(96 + b*16 + t*4, 4)
TF = lambda v, t: V(128 + (v & 1)*16 + t*4, 4)
PF = lambda tq, ks: V(160 + (tq*2+ks)*4, 4)
def UF(tau, ks):
    base = 192 + tau*8 if tau < 8 else 128 + (tau-8)*8
    return V(base + ks*4, 4)
X = lambda t, s: A_(t*24 + s*4, 4)
WB = lambda b, s: A_(96 + b*24 + s*4, 4)
sWAVE, sC, sMASK, sW6 = "s40", "s42", S(44, 2), "s49"
sCNT, sJOB, sLIM, sMODE, sFLAG = "s73", "s74", "s75", "s77", "s78"

SCR = 147456
pAf = [[A_(144 + (b*6+ks)*4, 4) for ks in range(6)] for b in range(2)]
pBf = [[V(176 + (a*6+ks)*4, 4) for ks in range(6)] for a in range(2)]
pD = [[V(224 + (a*2+b)*4, 4) for b in range(2)] for a in range(2)]
pO = [V(240 + a*4, 4) for a in range(2)]
sPV, sPS = "s54", "s55"
def scr_off(fb, n): return (n*1024 if n < 10 else 43008 + (n-10)*1024) if fb else n*1024
def prod_issue(fb=0):
    SB = 0 if fb else SCR
    o = []
    sv, st, t0, t1 = sPV, sPS, "s52", "s53"
    o.append(salu(f"s_mul_i32 {sv}, {sJOB}, 43", [sJOB], [sv]))
    o.append(salu(f"s_lshr_b32 {sv}, {sv}, 8", [sv], [sv, "scc"]))
    o.append(salu(f"s_mul_i32 {t0}, {sv}, 6", [sv], [t0]))
    o.append(salu(f"s_sub_u32 {st}, {sJOB}, {t0}", [sJOB, t0], [st, "scc"]))
    vi, vg, va, vb, vt = (V(16+k) for k in range(5))
    o.append(valu("v_and_b32", vi, 15, vLANE))
    o.append(valu("v_lshrrev_b32", vg, 4, vLANE))
    o.append(valu("v_lshrrev_b32", vt, 2, vi))
    o.append(valu("v_and_b32", vb, 3, vi))
    o.append(valu("v_lshl_add_u32", va, vt, 3, vb))
    o.append(valu("v_mul_u32_u24", va, 1152, va))
    o.append(valu("v_lshl_add_u32", va, vg, 4, va))
    o.append(salu(f"s_mul_i32 {t0}, {st}, {32*1152}", [st], [t0]))
    o.append(valu("v_add_u32", va, t0, va))
    o.append(valu("v_lshl_add_u32", V(21), vg, 3, vt))
    o.append(valu("v_lshlrev_b32", V(21), 6, V(21)))
    o.append(valu("v_lshl_add_u32", V(21), vb, 4, V(21)))
    o.append(valu("v_add_u32", V(21), SB, V(21)))
    o.append(valu("v_lshrrev_b32", vt, 2, vLANE))
    o.append(valu("v_mul_u32_u24", vt, 384, vt))
    o.append(valu("v_and_b32", vb, 3, vLANE))
    o.append(valu("v_lshl_add_u32", vb, vb, 4, vt))
    o.append(salu(f"s_lshl_b32 {t0}, {sv}, 6", [sv], [t0, "scc"]))
    o.append(valu("v_add_u32", vb, t0, vb))
    o.append(salu(f"s_movk_i32 {t1}, {4*1152}", [], [t1]))
    for n in range(12):
        o.append(salu(f"s_mov_b32 {t0}, {n*16*384}", [], [t0]))
        o.append(salu(f"s_mov_b32 m0, {SB + scr_off(fb, n)}", [], ["m0"]))
        o.append(vm(dma(vb, SRD_WO, t0)))
    for ks in range(6):
        for b in range(2): o.append(vm(bload("buffer_load_dwordx4", pAf[b][ks], va, SRD_W, t1 if b else 0, 768 + 64*ks)))
    return o
def mprod():
    o = []
    sv, st, t0, t1 = sPV, sPS, "s52", "s53"
    o.append(salu(f"s_mul_i32 {sv}, {sJOB}, 43", [sJOB], [sv]))
    o.append(salu(f"s_lshr_b32 {sv}, {sv}, 8", [sv], [sv, "scc"]))
    o.append(salu(f"s_mul_i32 {t0}, {sv}, 6", [sv], [t0]))
    o.append(salu(f"s_sub_u32 {st}, {sJOB}, {t0}", [sJOB, t0], [st, "scc"]))
    vi, vg, va, vb, vt = (V(16+k) for k in range(5))
    o.append(valu("v_and_b32", vi, 15, vLANE))
    o.append(valu("v_lshrrev_b32", vg, 4, vLANE))
    o.append(valu("v_lshrrev_b32", vt, 2, vi))
    o.append(valu("v_and_b32", vb, 3, vi))
    o.append(valu("v_lshl_add_u32", va, vt, 3, vb))
    o.append(valu("v_mul_u32_u24", va, 1152, va))
    o.append(valu("v_lshl_add_u32", va, vg, 4, va))
    o.append(salu(f"s_mul_i32 {t0}, {sv}, {32*1152}", [sv], [t0]))
    o.append(valu("v_add_u32", vb, t0, va))
    o.append(salu(f"s_mul_i32 {t0}, {st}, {32*1152}", [st], [t0]))
    o.append(valu("v_add_u32", va, t0, va))
    o.append(salu(f"s_movk_i32 {t1}, {4*1152}", [], [t1]))
    for ks in range(6):
        for b in range(2):
            o.append(vm(bload("buffer_load_dwordx4", pAf[b][ks], va, SRD_W, t1 if b else 0, 64*ks)))
            o.append(vm(bload("buffer_load_dwordx4", pBf[b][ks], vb, SRD_W, t1 if b else 0, 384 + 64*ks)))
    o.append(wait(vm=0))
    return o + prod_compute(0, 1)
def prod_compute(fb=0, isM=0):
    o = []
    sv, st, t0, t1 = sPV, sPS, "s52", "s53"
    for ks in range(6 if not isM else 0):
        for a in range(2):
            for h in range(2):
                o.append(ds_read("ds_read_b64_tr_b16", pBf[a][ks].sub(2*h, 2), V(21), scr_off(fb, 2*ks) + h*256 + 8*a))
    for ks in range(6):
        for a in range(2):
            for b in range(2):
                o.append(mfma(pD[a][b], pAf[b][ks], pBf[a][ks], None if ks == 0 else pD[a][b]))
    o.append(salu(f"s_mul_i32 {t0}, {sv}, 12288", [sv], [t0]))
    o.append(salu(f"s_lshl_b32 {t1}, {st}, 10", [st], [t1, "scc"]))
    o.append(salu(f"s_add_u32 {t0}, {t0}, {t1}", [t0, t1], [t0, "scc"]))
    if isM: o.append(salu(f"s_add_u32 {t0}, {t0}, {NOFF}", [t0], [t0, "scc"]))
    o.append(salu(f"s_add_u32 {t1}, {t0}, 6144", [t0], [t1, "scc"]))
    for a in range(2):
        for b in range(2):
            o.append(cvtpk(pO[a][2*b], pD[a][b][0], pD[a][b][1])); o.append(cvtpk(pO[a][2*b+1], pD[a][b][2], pD[a][b][3]))
        o.append(vm(bstore("buffer_store_dwordx4", pO[a], vL16, SRD_N, t1 if a else t0, 0, FLG[opt["pfl"]])))
    o.append(raw("s_nop 1"))
    return o
vPA, vPQ = V(22), V(23)
def slow_path():
    o = [label("L_slowN"), salu(f"s_movk_i32 {sCNT}, {opt['tmo']}", [], [sCNT]), label("L_pollN")]
    o.append(raw("s_sleep 4"))
    o.append(raw(f"buffer_load_dword {vPQ}, {vPA}, {SRD_D}, 0 offen offset:132 sc1", regs_of(vPA, SRD_D), regs_of(vPQ), "vload_untracked"))
    o.append(raw("s_waitcnt vmcnt(0)"))
    o.append(valu("v_cmp_ne_u32", "vcc", 0x01010101, vPQ))
    o.append(salu("s_cmp_eq_u64 vcc, 0", ["vcc"], ["scc"]))
    o.append(raw("s_cbranch_scc1 L_okN", ["scc"]))
    o.append(salu(f"s_sub_u32 {sCNT}, {sCNT}, 1", [sCNT], [sCNT, "scc"]))
    o.append(raw("s_cbranch_scc0 L_pollN", ["scc"]))
    o.append(salu(f"s_mov_b32 {sJOB}, 0", [], [sJOB]))
    o.append(label("L_fb"))
    o += prod_issue(1) + [wait(vm=0)] + prod_compute(1)
    o.append(salu(f"s_add_u32 {sJOB}, {sJOB}, 1", [sJOB], [sJOB, "scc"]))
    o.append(salu(f"s_cmp_lt_u32 {sJOB}, 36", [sJOB], ["scc"]))
    o.append(raw("s_cbranch_scc1 L_fb", ["scc"]))
    o.append(wait(vm=0))
    o.append(raw("s_branch L_okN"))
    o += [label("L_slowM"), salu(f"s_movk_i32 {sCNT}, {opt['tmo']}", [], [sCNT]), label("L_pollM")]
    o.append(raw(f"s_sleep {opt['bo']}"))
    o.append(raw(f"buffer_load_dword {vPQ}, off, {SRD_D}, 0 offset:128 sc1", regs_of(vPA, SRD_D), regs_of(vPQ), "vload_untracked"))
    o.append(raw("s_waitcnt vmcnt(0)"))
    o.append(valu("v_cmp_ne_u32", "vcc", 0x01010101, vPQ))
    o.append(salu("s_cmp_eq_u64 vcc, 0", ["vcc"], ["scc"]))
    o.append(raw("s_cbranch_scc1 L_okM", ["scc"]))
    o.append(salu(f"s_sub_u32 {sCNT}, {sCNT}, 1", [sCNT], [sCNT, "scc"]))
    o.append(raw("s_cbranch_scc0 L_pollM", ["scc"]))
    o.append(salu(f"s_mov_b32 {sJOB}, 0", [], [sJOB]))
    o.append(label("L_fbM"))
    o += mprod()
    o.append(salu(f"s_add_u32 {sJOB}, {sJOB}, 1", [sJOB], [sJOB, "scc"]))
    o.append(salu(f"s_cmp_lt_u32 {sJOB}, 36", [sJOB], ["scc"]))
    o.append(raw("s_cbranch_scc1 L_fbM", ["scc"]))
    o.append(wait(vm=0))
    o.append(raw("s_branch L_okM"))
    return finish(o)[0]

def stamp(k):
    return [P(raw(f"s_memtime s[{84+2*k}:{85+2*k}]", [], [], "smem"), pr=["#LDS"], pw=["#LDS"])] if opt["stamps"] else []

def main_kernel():
    pre = []
    if opt["stamps"]: pre.append(raw("s_memrealtime s[80:81]")); pre.append(raw("s_memtime s[84:85]")); pre.append(raw("s_memtime s[94:95]"))
    pre.append(raw("s_load_dwordx8 s[4:11], s[0:1], 0", ["s0","s1"], R("s",4,8), "smem"))
    pre.append(raw("s_load_dwordx4 s[12:15], s[0:1], 32", ["s0","s1"], R("s",12,4), "smem"))
    pre.append(salu("s_cmp_ge_u32 s2, 256", ["s2"], ["scc"]))
    pre.append(raw("s_cbranch_scc1 L_end", ["scc"]))
    t0, t1, t2, t3 = V(12), V(13), V(14), V(15)
    if opt["pf"]:
        pre.append(raw("s_getpc_b64 s[74:75]", [], ["s74", "s75"]))
        pre.append(salu("s_lshr_b32 s50, s2, 3", ["s2"], ["s50", "scc"]))
        if opt["pf"] == 2:
            pre.append(salu("s_mul_i32 s51, s50, 52", ["s50"], ["s51"]))
            pre.append(salu("s_lshr_b32 s51, s51, 8", ["s51"], ["s51", "scc"]))
            pre.append(salu("s_mul_i32 s51, s51, 5", ["s51"], ["s51"]))
            pre.append(salu("s_sub_u32 s50, s50, s51", ["s50", "s51"], ["s50", "scc"]))
        pre.append(salu("s_lshl_b32 s50, s50, 8", ["s50"], ["s50", "scc"]))
        pre.append(valu("v_add_u32", t0, "s50", "v0"))
        pre.append(salu("s_and_b32 s74, s74, 0xffffff00", ["s74"], ["s74", "scc"]))
        pre.append(valu("v_and_b32", t0, 0x7ff, t0))
        pre.append(valu("v_lshlrev_b32", t0, 4, t0))
        pre.append(valu("v_min_u32", t0, f"L_cend-{KN}-16", t0))
        pre.append(raw(f"global_load_dwordx4 v[244:247], {t0}, s[74:75]", ["v12", "s74", "s75"], [], "vload_untracked"))
    pre.append(valu("v_and_b32", vLANE, 63, "v0"))
    pre.append(valu("v_lshrrev_b32", t0, 6, "v0"))
    pre.append(valu("v_readfirstlane_b32", sWAVE, t0, k="rfl"))
    pre.append(valu("v_lshlrev_b32", vL16, 4, vLANE))
    pre.append(salu("s_lshr_b32 s50, s2, 3", ["s2"], ["s50", "scc"]))
    pre.append(salu("s_and_b32 s51, s2, 7", ["s2"], ["s51", "scc"]))
    pre.append(salu("s_lshl_b32 s51, s51, 2", ["s51"], ["s51", "scc"]))
    pre.append(salu(f"s_add_u32 s51, s51, {sWAVE}", ["s51", sWAVE], ["s51", "scc"]))
    pre.append(salu(f"s_mul_i32 s50, s50, {7*224*384}", ["s50"], ["s50"]))
    pre.append(salu(f"s_mul_i32 s51, s51, {7*384}", ["s51"], ["s51"]))
    pre.append(salu("s_add_u32 s50, s50, s51", ["s50", "s51"], ["s50", "scc"]))
    pre.append(salu("s_mov_b32 s47, s50", ["s50"], ["s47"]))
    pre.append(valu("v_and_b32", t0, 15, vLANE))
    pre.append(valu("v_lshrrev_b32", t1, 4, vLANE))
    pre.append(valu("v_lshlrev_b32", t2, 4, t1))
    pre.append(valu("v_add_u32", t2, "s50", t2))
    for t in range(3):
        pre.append(valu("v_add_u32", t3, 16*t, t0))
        pre.append(valu("v_mul_u32_u24", vXO[t], 37, t3))
        pre.append(valu("v_lshrrev_b32", vXO[t], 8, vXO[t]))
        pre.append(valu("v_mul_u32_u24", vXO[t], 217, vXO[t]))
        pre.append(valu("v_add_u32", vXO[t], vXO[t], t3))
        pre.append(valu("v_mul_u32_u24", vXO[t], 384, vXO[t]))
        pre.append(valu("v_add_u32", vXO[t], vXO[t], t2))
    pre.append(valu("v_add_u32", vXO[3], (6*224+6)*384, t2))
    pre.append(salu(f"s_lshl_b32 {sJOB}, {sWAVE}, 8", [sWAVE], [sJOB, "scc"]))
    pre.append(salu(f"s_add_u32 {sJOB}, {sJOB}, s2", [sJOB, "s2"], [sJOB, "scc"]))
    pre.append(salu(f"s_mul_i32 {sW6}, {sWAVE}, 6144", [sWAVE], [sW6]))
    pre.append(wait(lgkm=0))
    pre += srd(SRD_W, 6, 192*576*2) + srd(SRD_X, 4, XBYTES) + srd(SRD_N, 14, 0x200000 if opt["stamps"] else 2*NOFF) + srd(SRD_WO, 8, 192*192*2) + srd(SRD_D, 12, 256)
    pre = finish(pre)[0]
    stp = "s_memtime s[94:95]\n    " if opt["stamps"] else ""
    flx = lambda off: f"buffer_store_byte v16, v17, {SRD_D}, {sJOB} offen offset:{off} sc1\n    "
    fin = lambda off, no: f"s_waitcnt vmcnt(0)\n    v_mov_b32 v16, 1\n    v_mov_b32 v17, 0\n    s_mov_b64 exec, 1\n    {'' if no else flx(off)}{stp}s_mov_b64 exec, -1\n"
    finM = (f"s_waitcnt vmcnt(0)\n    v_mov_b32 v16, 1\n    s_mov_b64 exec, 1\n    buffer_atomic_add v16, off, {SRD_D}, 0 offset:64 sc0 sc1\n    {'s_barrier' if opt['ab'] else 's_nop 0'}\n    s_waitcnt vmcnt(0)\n"
            f"    v_readfirstlane_b32 s52, v16\n    v_mov_b32 v16, 0x01010101\n    s_cmp_lg_u32 s52, {35 + 100*opt['noflm']}\n    s_cbranch_scc1 L_nl\n"
            f"    buffer_store_dword v16, off, {SRD_D}, 0 offset:128 sc1\nL_nl:\n    {stp}s_mov_b64 exec, -1\n")
    pre.append(raw(f"s_mov_b32 {sMODE}, 0\n    s_cmp_ge_u32 {sJOB}, 72\n    s_cbranch_scc1 L_np1\n    s_setprio 3\n    s_mov_b32 {sMODE}, 1\n    s_cmp_ge_u32 {sJOB}, 36\n    s_cbranch_scc1 L_pn\n    "
        + text(finish(mprod())[0]).strip() + "\n    " + finM + f"    s_setprio 0\n    s_branch L_np1\nL_pn:\n    s_sub_u32 {sJOB}, {sJOB}, 36\n    s_mov_b32 {sMODE}, {1 if opt['nq'] else 2}\n    "
        + (text(finish(prod_issue() + [wait(vm=0)] + prod_compute())[0]).strip() + "\n    " + finM.replace("offset:64", "offset:0").replace("offset:128", "offset:132").replace("L_nl", "L_nl2").replace(f"s52, {35 + 100*opt['noflm']}", f"s52, {35 + 100*opt['nofl']}") + "    s_setprio 0" if opt['nq'] else text(finish(prod_issue())[0]).strip()) + "\nL_np1:", [], []))
    q = []
    def wpiece(kk, m, j):
        imm = m*384 + kk*128
        return [salu(f"s_add_u32 m0, {sL[j]}, {kk*49152 + m*24576 - imm}", [sL[j]], ["m0", "scc"]),
                vm(dma(vWA, SRD_W, sJ[j], f" offset:{imm}"), tag=f"W{kk}")]
    xl = []
    vXR = [[V(248+2*t+h) for h in range(2)] for t in range(4)]
    sXA, sXBb = "s68", "s69"
    xcnt = [0]
    RAW = lambda r, j: A_(48 + ((r-4)*3 + j)*4, 4)
    def xsetup(B):
        vXC = [V(B+j) for j in range(3)]; vXB = V(B+3); vL7 = V(B+4); u0, u1 = V(B+5), V(B+6)
        o = [valu("v_lshrrev_b32", u0, 3, vLANE), valu("v_lshlrev_b32", vXB, 7, u0), valu("v_add_u32", vXB, "s47", vXB), valu("v_and_b32", vL7, 7, vLANE)]
        for j in range(3):
            o += [valu("v_add_u32", u1, 8*j, u0), valu("v_mul_u32_u24", u1, 43, u1), valu("v_lshrrev_b32", vXC[j], 7, u1)]
        return o
    def xmask(d):
        d.t = "s_mov_b64 exec, s[70:71]\n    " + d.t + "\n    s_mov_b64 exec, -1"; d.rd |= {"s70", "s71"}; return d
    def xdma(r, B=200, reg=0):
        vXC = [V(B+j) for j in range(3)]; vXB = V(B+3); vL7 = V(B+4); vXT = [V(B+5), V(B+6), V(B+7)]
        o = []
        o.append(salu(f"s_mov_b32 s50, {r*86016}", [], ["s50"]))
        if not reg: o.append(salu(f"s_add_u32 m0, {sXA if r < 4 else sXBb}, {(r if r < 4 else r-4)*2688}", [sXA, sXBb], ["m0", "scc"]))
        for j in range(3):
            t = vXT[xcnt[0] % 3]; xcnt[0] += 1
            o.append(valu("v_add_u32", t, 7*r, vXC[j]))
            o.append(valu("v_bfe_u32", t, t, 1, 3))
            o.append(valu("v_xor_b32", t, t, vL7))
            o.append(valu("v_lshl_add_u32", t, t, 4, vXB))
            if reg: d = vm(bload("buffer_load_dwordx4", RAW(r, j), t, SRD_X, "s50", j*1024, FLG[opt["xfl"]]))
            else: d = vm(dma(t, SRD_X, "s50", f" offset:{j*1024}" + FLG[opt["xfl"]]), tag=f"XR{r}")
            o.append(xmask(d) if j == 2 else d)
        return o
    def wmix(kk, nx):
        o = []; ws = [wpiece(kk, m, j) for m in range(2) for j in range(6)]
        done = 0
        for n, w in enumerate(ws):
            o += w
            want = (nx * (n+1) // 12) // 2 * 2
            while done < want: o.append(xl.pop(0)); done += 1
        return o
    XS = (0, 0, 0)
    q.append(salu("s_mov_b32 s70, -1", [], ["s70"])); q.append(salu("s_movk_i32 s71, 0xff", [], ["s71"]))
    q += xsetup(200)
    q.append(salu(f"s_mul_i32 {sXA}, {sWAVE}, 10752", [sWAVE], [sXA]))
    q.append(salu(f"s_lshl_b32 {sXBb}, {sWAVE}, 13", [sWAVE], [sXBb, "scc"]))
    q.append(salu(f"s_add_u32 {sXBb}, {sXBb}, 49152", [sXBb], [sXBb, "scc"]))
    rows = lambda rs: text(finish([i for r in rs for i in xdma(r)])[0]).strip()
    pe = opt["pearly"]
    slp = f"s_cmp_eq_u32 {sMODE}, 2\n    s_cbranch_scc1 L_x1\n    s_sleep {opt['hs']}\nL_x1:\n    " if opt["hs"] else ""
    tx = f"s_cmp_eq_u32 {sMODE}, 1\n    s_cbranch_scc1 L_pw\n    " + slp + rows(range(pe)) + f"\n    s_cmp_ge_u32 s2, {72 if opt['nq'] else 36}\n    s_cbranch_scc1 L_x2\n    s_barrier\n    s_branch L_x2\nL_pw:\n    " + ("" if opt["ab"] else "s_barrier\n    ")
    ncmp = f"\n    s_cmp_lg_u32 {sMODE}, 2\n    s_cbranch_scc1 L_x3\n    s_waitcnt vmcnt({3*pe if opt['nsp'] else 21})\n    s_nop 4\n    " + text(finish(prod_compute() + (xsetup(200) if opt['nsp'] else []))[0]).strip() + "\n    s_setprio 0\n    s_nop 4\nL_x3:\n    "
    if opt["nq"]: ncmp = ""
    tx += rows(range(pe)) + "\nL_x2:\n    " + (ncmp if opt['nsp'] else "") + rows(range(pe, 7)) + ("" if opt['nsp'] else ncmp)
    q.append(raw("s_nop 4\n    " + tx, [], []))
    q += srd(SRD_O, 10, XBYTES)
    q.append(salu(f"s_lshl_b32 s52, {sWAVE}, 2", [sWAVE], ["s52", "scc"]))
    q.append(valu("v_cmp_eq_u32", "vcc", "s52", t0))
    q.append(valu("v_mov_b32", vSO3, 0x7f000000))
    q.append(valu("v_cndmask_b32", vSO3, vSO3, vXO[3], "vcc"))
    q.append(valu("v_mov_b32", vNR[0], vL16))
    q.append(valu("v_add_u32", vNR[1], 49152, vL16))
    q.append(valu("v_add_u32", vNR[2], 98304, vL16))
    q.append(valu("v_add_u32", vND, sW6, vL16))
    q.append(valu("v_mov_b32", vPA, 0))
    q.append(valu("v_mov_b32", vNINF, 0xff800000))

    c = 192 ** -0.5 * math.log2(math.e)
    q.append(salu(f"s_mov_b32 {sC}, 0x{struct.unpack('<I', struct.pack('<f', c))[0]:08x}", [], [sC]))
    q.append(salu(f"s_mov_b32 s43, {sC}", [sC], ["s43"]))
    q.append(salu(f"s_mov_b64 {sMASK}, 0xffff", [], sMASK.regs()))
    q.append(salu(f"s_lshl_b32 s52, {sWAVE}, 4", [sWAVE], ["s52", "scc"]))
    q.append(salu(f"s_lshl_b64 {sMASK}, {sMASK}, s52", sMASK.regs() + ["s52"], sMASK.regs() + ["scc"]))
    q += stamp(1)
    u0, u1 = V(205), V(206)
    q.append(valu("v_add_u32", V(31), sXBb, vL16))
    q.append(salu(f"s_sub_u32 s52, {sXBb}, 10752", [sXBb], ["s52", "scc"]))
    q.append(valu("v_lshrrev_b32", u0, 1, t0))
    q.append(valu("v_xor_b32", u0, u0, t1))
    q.append(valu("v_lshlrev_b32", u0, 4, u0))
    q.append(valu("v_mul_u32_u24", u1, 384, t0))
    q.append(valu("v_add_u32", u0, u0, u1))
    q.append(valu("v_add_u32", vXR[0][0], sXA, u0))
    q.append(valu("v_add_u32", vXR[2][0], "s52", u0))
    q.append(valu("v_cmp_gt_u32", "vcc", 12, t0))
    q.append(valu("v_cndmask_b32", vXR[1][0], vXR[2][0], vXR[0][0], "vcc"))
    q.append(valu("v_add_u32", vXR[1][0], 16*384, vXR[1][0]))
    q.append(valu("v_add_u32", vXR[2][0], 32*384, vXR[2][0]))
    q.append(valu("v_lshlrev_b32", u1, 4, t1))
    q.append(valu("v_lshrrev_b32", u0, 2, t0))
    q.append(valu("v_lshl_add_u32", u1, u0, 13, u1))
    q.append(valu("v_add_u32", vXR[3][0], 49152 + 20*384, u1))
    q.append(valu("v_add_u32", vM3, MOFF, vND))
    for t in range(4): q.append(valu("v_xor_b32", vXR[t][1], 64, vXR[t][0]))

    p = []
    def sync(tag, rdregs, after=(), lg=None):
        w = I("WAIT", rdregs, [], "wait", {"tag": tag, "lgkm": lg, "vm": None})
        p.append(P(w, pr=["#LDS", "#VM"] + list(after), pw=["#LDS", "#VM"], fence=1))
        p.append(P(barrier(), pr=["#LDS"], pw=["#LDS"], fence=1))
    def wdma(base, part, tag, out):
        for half in range(2):
            off = part*24576 + half*4096
            out.append(salu(f"s_mov_b32 s50, {off + (NOFF if base else 0)}", [], ["s50"]))
            out.append(salu(f"s_add_u32 m0, {sW6}, {off + base}", [sW6], ["m0", "scc"]))
            for jj in range(4 if half == 0 else 2):
                out.append(vm(dma(vND, SRD_N, "s50", f" offset:{jj*1024}" + FLG[opt["mml" if base else "mfl"]]), tag=tag))
    def reads(n):
        for s in range(6):
            off = MOFF + (n*6 + s)*1024 if n < 12 else ((n-12)*6 + s)*1024
            bi = min(off // 49152, 2)
            p.append(P(ds_read("ds_read_b128", WB(n & 1, s), vNR[bi], off - bi*49152), pr=["#LDS"]))
    AC3 = lambda k: ACC(k & 1, 3)
    T3T = {opt["t3a"] + opt["t3s"]*k: k for k in range(3)}
    NB = opt["nb"]
    U3T = {NB + 1 + k: k for k in range(3)}
    assert NB + 3 <= 10 and max(T3T) < NB
    def reads3(k, isN):
        for s in range(6):
            p.append(P(ds_read("ds_read_b128", WB3(s), vND if isN else vM3, k*24576 + s*1024), pr=["#LDS"]))
    def out3(k):
        c = AC3(k)
        p.append(cvtpk(c[0], c[0], c[1])); p.append(cvtpk(c[1], c[2], c[3]))
        p.append(P(ds_write("ds_write_b64", vE, c.sub(0, 2), k*2048), pr=["#LDS"], pw=["#E"]))
    def tgroup(tau):
        b = tau & 1
        for s in range(6):
            for t in range(3):
                i = mfma(ACC(b, t), WB(b, s), X(t, s), None if s == 0 else ACC(b, t))
                if s == 3 and t == 0: P(i, pw=[f"#g{tau}"])
                p.append(i)
            if tau in T3T: p.append(mfma(AC3(T3T[tau]), WB3(s), X(3, s), None if s == 0 else AC3(T3T[tau])))
            if tau in U3T: p.append(mfma(AC3(U3T[tau]), X(3, s), WB3(s), None if s == 0 else AC3(U3T[tau])))
    def tcvts(tau):
        a = tau & 1
        for t in range(3):
            d = TF(tau >> 1, t)
            p.append(cvtpk(d[2*a], ACC(a, t)[0], ACC(a, t)[1])); p.append(cvtpk(d[2*a+1], ACC(a, t)[2], ACC(a, t)[3]))
        if tau in T3T: out3(T3T[tau])
        if tau in U3T and tau != 10: out3(U3T[tau])
    def sblock(v):
        for tq in range(3):
            for tk in range(4):
                p.append(mfma(SA(tk, tq), X(tk, v), TF(v, tq), None if v == 0 else SA(tk, tq)))
    def sblock3():
        for v in range(6):
            for tk in range(4):
                p.append(mfma(SA(tk, 3), X(tk, v), TF3(v), None if v == 0 else SA(tk, 3)))
    def ugroup(tau):
        b = tau & 1
        for s in range(6):
            for t in range(3):
                p.append(mfma(ACC(b, t), X(t, s), WB(b, s), None if s == 0 else ACC(b, t)))
    def ucvts(tau):
        b = tau & 1
        for t in range(3):
            d = UF(tau, t >> 1)
            p.append(cvtpk(d[2*(t&1)], ACC(b, t)[0], ACC(b, t)[1])); p.append(cvtpk(d[2*(t&1)+1], ACC(b, t)[2], ACC(b, t)[3]))
    def xlane(op, m, m2):
        for sw in ("v_permlane32_swap_b32", "v_permlane16_swap_b32"):
            p.append(valu("v_mov_b32", m2, m))
            p.append(I(f"{sw} {m}, {m2}", regs_of(m, m2), regs_of(m, m2), "perm"))
            p.append(valu(op, m, m, m2))
    def softmax(tq):
        n0_ = len(p)
        m, m2, s1, s2 = (TMP(tq, k) for k in range(4))
        vals = [SA(tk, tq)[r] for tk in range(3) for r in range(4)] + [SA(3, tq)[0]]
        L = vals[12]
        p.append(valu("v_cndmask_b32", L, vNINF, L, sMASK))
        p.append(valu("v_max3_f32", m, vals[0], vals[1], vals[2]))
        p.append(valu("v_max3_f32", m2, vals[3], vals[4], vals[5]))
        p.append(valu("v_max3_f32", m, m, vals[6], vals[7]))
        p.append(valu("v_max3_f32", m2, m2, vals[8], vals[9]))
        p.append(valu("v_max3_f32", m, m, vals[10], vals[11]))
        p.append(valu("v_max3_f32", m, m, m2, L))
        xlane("v_max_f32", m, m2)
        p.append(valu("v_mul_f32", m, sC, m))
        for k, v in enumerate(vals):
            p.append(valu("v_fma_f32", v, v, sC, "-" + str(m)))
            p.append(valu("v_exp_f32", v, v, k="trans"))
            if k == 3: p.append(valu("v_add_f32", s1, vals[0], vals[1]))
            if k == 4: p.append(valu("v_add_f32", s2, vals[2], vals[3]))
            if k >= 5: p.append(valu("v_add_f32", (s1, s2)[k & 1], (s1, s2)[k & 1], vals[k-1]))
        p.append(valu("v_add_f32", s2, s2, L))
        p.append(valu("v_add_f32", s1, s1, s2))
        xlane("v_add_f32", s1, s2)
        p.append(valu("v_rcp_f32", s1, s1, k="trans"))
        for k in range(6):
            for h in range(2): p.append(valu("v_mul_f32", vals[2*k+h], vals[2*k+h], s1))
            p.append(cvtpk(PF(tq, k >> 2)[k & 3], vals[2*k], vals[2*k+1]))
        p.append(valu("v_mul_f32", L, L, s1))
        p.append(cvtpk(PF(tq, 1)[2], L, 0))
        p.append(valu("v_mov_b32", PF(tq, 1)[3], 0))
        for i in p[n0_:]: i.x["bg"] = 1
    OA = lambda b, a, tq: V(32 + b*32 + (a*4+tq)*4, 4)
    OUT = lambda k: V(16 + (k % 4)*4, 4)
    cnt = [0]
    def omf(v, tq, a):
        for ks in range(2):
            p.append(mfma(OA(v & 1, a, tq), UF(2*v+a, ks), PF(tq, ks), None if ks == 0 else OA(v & 1, a, tq)))
    def ost(v, tq):
        b = v & 1; o = OA(b, 0, tq)
        for a in range(2):
            p.append(cvtpk(o[2*a], OA(b, a, tq)[0], OA(b, a, tq)[1])); p.append(cvtpk(o[2*a+1], OA(b, a, tq)[2], OA(b, a, tq)[3]))
        p.append(vm(bstore("buffer_store_dwordx4", o, vXO[tq] if tq < 3 else vSO3, SRD_O, 0, 64*v, FLG[opt["sfl"]])))
    def ounit(v, tq): omf(v, tq, 0); omf(v, tq, 1); ost(v, tq)
    PRODREGS = R("v", 176, 72) + R("v", 16, 6) + ["v23"] + R("s", 52, 4) + ["vcc", "m0"]
    FA = lambda buf, sp, b: A_(96 + buf*48 + (sp*2+b)*4, 4)
    FB = lambda buf, vp, a: A_(96 + buf*48 + 24 + (vp*2+a)*4, 4)
    MD = lambda vp, a, sp, b: V(32 + (((vp*2+a)*3+sp)*2+b)*4, 4)
    def mreads(ks):
        kk, kh = ks >> 1, ks & 1
        base = 49152 if kk == 1 else 0
        for x in range(3):
            for y in range(2):
                p.append(P(ds_read("ds_read_b128", FA(ks & 1, x, y), vRA[kh], base + x*4096 + y*512), pr=["#LDS"]))
                p.append(P(ds_read("ds_read_b128", FB(ks & 1, x, y), vRB[kh], base + x*4096 + y*512), pr=["#LDS"]))
    def mgroup(ks):
        for vp in range(3):
            for a in range(2):
                for sp in range(3):
                    for b in range(2):
                        p.append(mfma(MD(vp, a, sp, b), FA(ks & 1, sp, b), FB(ks & 1, vp, a), None if ks == 0 else MD(vp, a, sp, b)))
    allF = [r for buf in range(2) for r in A_(96 + buf*48, 48).regs()]
    fl = "" if opt["nofl"] else f"buffer_store_byte v16, v17, {SRD_D}, {sJOB} offen sc1\n    "
    st = "s_memtime s[94:95]\n    " if opt["stamps"] else ""
    flag = P(raw(f"s_cmp_ge_u32 {sJOB}, 36\n    s_cbranch_scc1 L_np3\n    v_mov_b32 v16, 1\n    v_mov_b32 v17, 0\n    s_mov_b64 exec, 1\n    {fl}{st}s_mov_b64 exec, -1\nL_np3:", [sJOB], ["scc", "v16", "v17"]), pr=["#LDS", "#VM"], pw=["#LDS", "#VM"], fence=1)
    def mark(c):
        for k in (6, 7, 8):
            if opt[f"st{k}"] == c: p.extend(stamp(k))
    def xwait(tag): p.append(P(I("WAIT", [], [], "wait", {"tag": tag, "lgkm": None, "vm": None}), pr=["#LDS", "#VM"], pw=["#LDS", "#VM"], fence=1))
    def xreads(ts):
        for s in range(6):
            for t in ts: p.append(P(ds_read("ds_read_b128", X(t, s), vXR[t][s & 1], (s >> 1)*128), pr=["#LDS", "#XW"]))
    def stage(k0, lead, loads):
        n = len(p); mgroup(k0); mgroup(k0+1); g = p[n:]; del p[n:]
        P(g[max(lead, 1)-1], pw=[f"#ld{k0}"])
        p.extend(g)
        for i in loads:
            if i.k in ("dma", "vload"): P(i, pr=[f"#ld{k0}"])
            p.append(i)
    NP = opt["npo"]
    finN = (f"\n    s_cmp_lg_u32 {sMODE}, 2\n    s_cbranch_scc1 L_npA\n    v_mov_b32 v17, 1\n    s_mov_b64 exec, 1\n    buffer_atomic_add v17, off, {SRD_D}, 0 offset:0 sc0 sc1\n    s_waitcnt vmcnt(0)\n"
            f"    v_readfirstlane_b32 s52, v17\n    v_mov_b32 v17, 0x01010101\n    s_cmp_lg_u32 s52, {35 + 100*opt['nofl']}\n    s_cbranch_scc1 L_nf\n"
            f"    buffer_store_dword v17, off, {SRD_D}, 0 offset:132 sc1\nL_nf:\n    {stp}s_mov_b64 exec, -1")
    if opt["nq"]: finN = ""
    ld = lambda k: f"buffer_load_dword v{16+k}, off, {SRD_D}, 0 offset:128 sc1\n    "
    p.append(P(raw(f"s_cmp_lg_u32 {sWAVE}, 0\n    s_cbranch_scc1 L_npA\n    s_waitcnt vmcnt(0)\n    " + f"s_sleep {opt['psl']}\n    ".join(ld(k) for k in range(NP)).rstrip() + finN + "\nL_npA:",
                   [sWAVE] + regs_of(vPA), ["scc", "s52"] + R("v", 16, NP+1)), pr=["#LDS", "#VM"], pw=["#LDS", "#VM"], fence=1))
    mark(-1)
    chk = "".join(f"s_waitcnt vmcnt({NP-1-k})\n    v_cmp_ne_u32 vcc, 0x01010101, v{16+k}\n    s_nop 0\n    s_cmp_eq_u64 vcc, 0\n    s_cbranch_scc1 L_okM\n    " for k in range(NP))
    p.append(P(raw(f"s_cmp_lg_u32 {sWAVE}, 0\n    s_cbranch_scc1 L_wx\n    " + chk + "s_branch L_slowM\nL_wx:\n    s_waitcnt vmcnt(0)\nL_okM:", [sWAVE], PRODREGS + ["scc"] + A_(144, 48).regs()), pr=["#LDS", "#VM"], pw=["#LDS", "#VM"], fence=1))
    p.append(P(barrier(), pr=["#LDS"], pw=["#LDS", "#VM"], fence=1))
    mark(-3)
    for part in range(3): wdma(MOFF, part, f"M{part}", p)
    xreads([0, 1, 2, 3])
    sync(f"M{opt['ms']}", [])
    if opt["early"]: p.append(P(vm(bload("buffer_load_dword", vPQ, vPA, SRD_D, 0, 132, " sc1")), pr=["#LDS"]))
    mark(-4)
    p += stamp(2)
    reads(0)
    PT = opt["ptau"]
    assert opt["xe"] and opt["t3a"] > PT
    p.append(valu("v_lshlrev_b32", vR8, 3, vLANE))
    p.append(valu("v_add_u32", vR8, T3B, vR8))
    p.append(salu(f"s_lshl_b32 s50, {sWAVE}, 9", [sWAVE], ["s50", "scc"]))
    p.append(valu("v_add_u32", vE, "s50", vR8))
    for tau in range(12):
        last = tau == 11
        reads(tau+1)
        if tau in T3T: reads3(T3T[tau], 0)
        if tau in U3T: reads3(U3T[tau], 1)
        if tau == 11 and 10 in U3T: out3(U3T[10])
        gm = len(p); tgroup(tau); g = p[gm:]; del p[gm:]
        if tau == PT - 1 and not opt["early"]:
            p.append(P(vm(bload("buffer_load_dword", vPQ, vPA, SRD_D, 0, 132, " sc1")), pr=[f"#g{tau-1}"]))
        if tau == PT or last or tau == NB:
            p.extend(g[:10])
            if tau == PT:
                p.append(P(valu("v_cmp_ne_u32", "vcc", 0x01010101, vPQ), pr=[f"#g{tau}"], fence=1))
                p.append(P(salu("s_cmp_eq_u64 vcc, 0", ["vcc"], ["scc"]), fence=1))
                p.append(P(salu(f"s_cselect_b32 s52, 1, {sWAVE}", ["scc", sWAVE], ["s52"]), fence=1))
                p.append(P(salu("s_cmp_eq_u32 s52, 0", ["s52"], ["scc"]), fence=1))
                p.append(P(raw("s_cbranch_scc1 L_slowN\nL_okN:", ["scc"], PRODREGS), pr=["#LDS", "#VM"], pw=["#LDS", "#VM"], fence=1))
                sync("M2", [])
                nb = len(p)
                for part in range(3): wdma(0, part, "N", p)
                for i in p[nb:]: i.x["bg"] = 1
            elif tau == NB:
                sync("N", [], after=[f"#g{tau}", "#E"], lg=0)
                for v in range(6):
                    p.append(P(I(f"ds_read2st64_b64 {TF3(v)}, {vR8} offset0:{2*v} offset1:{2*v+1}", regs_of(vR8), regs_of(TF3(v)), "ds_read"), pr=["#LDS"]))
                p.append(valu("v_add_u32", vE, U3D, vE)); p.append(valu("v_add_u32", vR8, U3D, vR8))
            else:
                sync("none", [], after=[f"#g{tau}", "#E"], lg=0)
                p += stamp(3)
                for t2_ in range(8): p.append(P(ds_read("ds_read_b64", UF(t2_, 1).sub(2, 2), vR8, t2_*512), pr=["#LDS"], bg=1))
            p.extend(g[10:])
        else: p.extend(g)
        if tau > 0: tcvts(tau-1)
        if tau >= 2 and tau % 2 == 0: sblock(tau//2 - 1)
        if tau == NB: sblock3(); softmax(3)
    n1 = len([i for i in p if i.k == "mfma"])
    reads(13); ugroup(0); tcvts(11); sblock(5)
    ucvts(0)
    for t2_ in range(8, 12): p.append(P(ds_read("ds_read_b64", UF(t2_, 1).sub(2, 2), vR8, t2_*512), pr=["#LDS"]))
    SEQ = {
     1: {3: "00", 4: "10", 6: "20 01 11", 7: "21", 8: "30 31", 9: "02 12 22", 10: "32 40 41 42", 11: "03 13 23 33 43"},
     2: {3: "00", 4: "10", 5: "01", 6: "11 20 21", 8: "30 31 02 12", 9: "22 32", 10: "40 41 42 03 13", 11: "23 33 43"},
     3: {4: "00 10", 6: "20 01 11", 7: "21", 8: "30 31", 9: "02 12 22 32", 10: "40 41 42", 11: "03 13 23 33 43"},
     4: {4: "00 10", 6: "20", 7: "01 11 21", 8: "30 31", 10: "02 12 22 32 40 41 42", 11: "03 13 23 33 43"},
     5: {3: "00", 4: "10", 6: "20", 7: "01 11 21", 8: "30 31", 10: "40 41 02 12", 11: "22 32 42 50 51 52 03 13 23 33 43 53"},
     6: {4: "00 10", 6: "20", 7: "01 11 21", 8: "30 31", 10: "40 41 02 12 22", 11: "32 42 50 51 52 03 13 23 33 43 53"},
     7: {3: "00", 4: "10", 6: "20 01", 7: "11 21", 8: "30 31", 9: "02", 10: "40 41 12 22", 11: "32 42 50 51 52 03 13 23 33 43 53"},
     8: {3: "00", 4: "10", 6: "20", 7: "01 11", 8: "21 30", 9: "31", 10: "40 41", 11: "02 12 22 32 42 50 51 52 03 13 23 33 43 53"},
     9: {2: "03", 3: "00", 4: "10 13", 6: "20 23 01", 7: "11 21", 8: "30 31 33", 9: "02", 10: "12 22 32 40 41 42 43", 11: "50 51 52 53"},
     10: {2: "03", 4: "00 10 13", 6: "20 23", 7: "01 11 21", 8: "30 31 33", 10: "40 41 43 02 12 22", 11: "32 42 50 51 52 53"},
     11: {2: "03", 3: "00", 4: "10 13", 6: "20 23 01 11", 7: "21", 8: "30 31 33 02", 9: "12 22 32", 10: "40 41 42 43", 11: "50 51 52 53"},
     12: {2: "03", 4: "13 00 10", 6: "23 20", 7: "01 11 21", 8: "33 30 31", 9: "02 12", 10: "43 40 41 22 32 42", 11: "53 50 51 52"},
     13: {2: "03", 4: "13", 5: "00 10", 6: "20 23", 8: "30 33 01 11", 9: "21 31", 10: "40 43 41", 11: "50 53 51 02 12 22 32 42 52"},
     14: {2: "03", 4: "13 00", 5: "10", 6: "20 23", 7: "01", 8: "30 33 11 21", 9: "31", 10: "40 43 41 02", 11: "12 22 50 53 51 32 42 52"},
     15: {2: "03", 4: "13 00 10", 6: "20 23", 7: "01 11", 8: "21 30 33 31", 10: "40 43 41 02 12", 11: "22 32 50 53 51 42 52"},
     16: {2: "03", 4: "13 00 10", 6: "20 23", 7: "01 11 21", 8: "30 33 31", 10: "40 43 41 02 12 22 32", 11: "42 50 53 51 52"},
    }[opt["seq"]]
    for tq in range(3): softmax(tq)
    for tau in range(1, 12):
        if tau + 1 < 12: reads(12+tau+1)
        for k in (6, 7, 8):
            if tau == opt[f"st{k}"]: p.extend(stamp(k))
        if tau == opt["wb"]:
            p.append(P(raw(f"s_cmp_ge_u32 {sJOB}, {opt['wbn']}\n    s_cbranch_scc1 L_nwb\n    buffer_wbl2 sc1\nL_nwb:", [sJOB], ["scc"]), pr=["#VM"], pw=["#VM"]))
        ugroup(tau)
        ucvts(tau)
        for e in SEQ.get(tau, "").split(): ounit(int(e[0]), int(e[1]))
    if opt["seq"] < 5:
        for tq in range(4): omf(5, tq, 0)
        for tq in range(4): omf(5, tq, 1); ost(5, tq)
    n2 = n1 + 24 + 16 + 24*8 + 40
    mf = [i for i in p if i.k == "mfma"]
    mi = {id(i): n for n, i in enumerate(mf)}
    def perfn(j):
        n = mi[id(p[j])]
        return opt["per1"] if n < n1 + 40 else (opt["persm"] if n < n2 else opt["per2"])
    body, t = schedule(p, look=32, perfn=perfn)
    post = []
    if opt["stamps"]:
        post.append(raw("s_memtime s[92:93]")); post.append(raw("s_memrealtime s[82:83]"))
        post.append(wait(lgkm=0))
        post.append(salu("s_lshl_b32 s50, s2, 2")); post.append(salu(f"s_add_u32 s50, s50, {sWAVE}")); post.append(salu("s_lshl_b32 s50, s50, 6")); post.append(salu("s_add_u32 s50, s50, 0x100000"))
        for k, (a, b) in enumerate([("s80", None), ("s81", None), ("s82", None), ("s94", "s84"), ("s86", "s84"), ("s88", "s84"), ("s90", "s84"), ("s92", "s84"), ("s96", "s84"), ("s98", "s84"), ("s100", "s84"), ("s100", None)]):
            if b: post.append(salu(f"s_sub_u32 {a}, {a}, {b}"))
            post.append(valu("v_mov_b32", V(96+k), a))
        post.append(valu("v_mov_b32", V(108), 0))
        post.append(salu("s_mov_b64 exec, 1"))
        for k in range(3): post.append(bstore("buffer_store_dwordx4", V(96+4*k,4), V(108), SRD_N, "s50", 16*k))
    post.append(label("L_end")); post.append(raw("s_endpgm"))
    full, nn = finish(q + body + post)
    tail = slow_path()
    sys.stderr.write(f"main: {len(full)} instrs, mfma {len(mf)}, est cycles {t}, nop states {nn}\n")
    return pre + full + tail

print(f"""; swin window attention: M = Wq*Wk^T and N = Wv*Wo are computed once by 72 producer
; @launch grid=(256,1,1) block=(256,1,1) lds=163840
.amdgcn_target "amdgcn-amd-amdhsa--gfx950"
.text
.globl {KN}
.p2align 8
.type {KN},@function
{KN}:
{text(main_kernel())}
.p2align 6
L_cend:
.section .rodata,"a"
.p2align 6
.amdhsa_kernel {KN}
  .amdhsa_next_free_vgpr 448
  .amdhsa_next_free_sgpr 102
  .amdhsa_accum_offset 256
  .amdhsa_group_segment_fixed_size 0
  .amdhsa_kernarg_size 48
  .amdhsa_user_sgpr_count 2
  .amdhsa_user_sgpr_kernarg_segment_ptr 1
  .amdhsa_system_sgpr_workgroup_id_x 1
.end_amdhsa_kernel""")
```
